```python
import torch

def _softmax(x, axis=-1):
    return torch.softmax(x, dim=axis)

def _gelu(x):
    return torch.nn.functional.gelu(x, approximate='tanh')

def _silu(x):
    return torch.nn.functional.silu(x)

def _sigmoid(x):
    return torch.sigmoid(x)

def _layernorm(x, axis=-1, eps=1e-05):
    m = x.mean(dim=axis, keepdim=True)
    v = x.var(dim=axis, keepdim=True, unbiased=False)
    return (x - m) / torch.sqrt(v + eps)

def _scatter_add(tgt, idx, src, axis=0):
    return tgt.clone().index_add_(axis, idx, src)

def _segment_sum(src, seg, n):
    out = torch.zeros((n,) + src.shape[1:], dtype=src.dtype)
    return out.index_add_(0, seg, src)

def _pad(x, pw):
    flat = tuple((v for pair in reversed(pw) for v in pair))
    return torch.nn.functional.pad(x, flat)
kernel_name = 'standalone__neighborhood_dinat__vision'

def setup_inputs():

    _w = lambda a: (lambda t: t.to(torch.bfloat16) if t.is_floating_point() else t)(torch.as_tensor(a))
    ks, dil, nh = (7, 2, 4)
    H = W = max(ks * dil, 224 // dil * dil)
    C = max(nh, 96 // nh * nh)
    return {'x': _w((lambda *s: torch.randn(*s, dtype=torch.bfloat16) * 0.4)(1, H, W, C)), 'wqkv': _w((lambda *s: torch.randn(*s, dtype=torch.bfloat16) * 0.4)(C, 3 * C)), 'wo': _w((lambda *s: torch.randn(*s, dtype=torch.bfloat16) * 0.4)(C, C)), 'rpb': _w((lambda *s: torch.randn(*s, dtype=torch.bfloat16) * 0.4)(nh, 2 * ks - 1, 2 * ks - 1))}

def reference(x, wqkv, wo, rpb):
    B, H, W, C = x.shape
    ks, dil, nh = (7, 2, 4)
    hd = C // nh
    scale = hd ** (-0.5)
    qkv = (x @ wqkv).reshape(B, H, W, 3, nh, hd)
    q = qkv[:, :, :, 0].clone()
    k = qkv[:, :, :, 1].clone()
    v = qkv[:, :, :, 2].clone()
    ih = torch.arange(H)
    iw = torch.arange(W)
    m = torch.arange(ks)
    sh = torch.clip(ih // dil - ks // 2, 0, H // dil - ks)
    sw = torch.clip(iw // dil - ks // 2, 0, W // dil - ks)
    kh = (sh[:, None] + m[None, :]) * dil + (ih % dil)[:, None]
    kw = (sw[:, None] + m[None, :]) * dil + (iw % dil)[:, None]
    rh = sh[:, None] + m[None, :] - (ih // dil)[:, None] + (ks - 1)
    rw = sw[:, None] + m[None, :] - (iw // dil)[:, None] + (ks - 1)
    ih4 = kh[:, :, None, None].clone()
    iw4 = kw[None, None, :, :].clone()
    kg = (lambda x, *d: x.permute(*d))(k[:, ih4, iw4, :, :], 0, 1, 3, 5, 2, 4, 6).reshape(B, H, W, nh, ks * ks, hd)
    vg = (lambda x, *d: x.permute(*d))(v[:, ih4, iw4, :, :], 0, 1, 3, 5, 2, 4, 6).reshape(B, H, W, nh, ks * ks, hd)
    bg = (lambda x, *d: x.permute(*d))(rpb[:, rh[:, :, None, None], rw[None, None, :, :]], 1, 3, 0, 2, 4).reshape(1, H, W, nh, ks * ks)
    logits = torch.einsum('bhwnd,bhwnkd->bhwnk', q, kg) * scale + bg
    attn = _softmax(logits, axis=-1)
    out = torch.einsum('bhwnk,bhwnkd->bhwnd', attn, vg).reshape(B, H, W, C)
    return out @ wo
```

```python
import re

class I:
    __slots__ = ("text","kind","vd","vu","sd","su","a","b","c","d","after","before","bar","body","cond",
                 "idx","prio","wide","opt","pin","note","vmwait")
    def __init__(s, text, kind, vd=(), vu=(), sd=(), su=(), **kw):
        s.text=text; s.kind=kind
        s.vd=frozenset(vd); s.vu=frozenset(vu); s.sd=frozenset(sd); s.su=frozenset(su)
        s.a=s.b=s.c=s.d=frozenset()
        s.after=None; s.before=None; s.bar=None; s.body=None; s.cond=None
        s.idx=0; s.prio=0; s.wide=False; s.opt=None; s.pin=False; s.note=None; s.vmwait=None
        for k,v in kw.items(): setattr(s,k,v)
    def __repr__(s): return s.text

def R(base, n=1): return list(range(base, base+n))
def vr(base, n=1): return f"v{base}" if n==1 else f"v[{base}:{base+n-1}]"
def sr(base, n=1): return f"s{base}" if n==1 else f"s[{base}:{base+n-1}]"

_op_re = re.compile(r"^(-?)(?:abs\()?([vs])(?:(\d+)|\[(\d+):(\d+)\])\)?$")
def parse_opnd(o):
    o=o.strip()
    if o in ("vcc","exec","m0","scc"): return set(), {o}
    if o in ("vcc_lo","vcc_hi"): return set(), {"vcc"}
    if o in ("exec_lo","exec_hi"): return set(), {"exec"}
    m=_op_re.match(o)
    if not m: return set(), set()
    lo=int(m.group(3) if m.group(3) is not None else m.group(4)); hi=int(m.group(3) if m.group(3) is not None else m.group(5))
    rs=set(range(lo,hi+1))
    return (rs,set()) if m.group(2)=="v" else (set(),rs)

TRANS=("v_exp_f32","v_rcp_f32","v_log_f32","v_rsq_f32","v_sqrt_f32")
def V(op, *ops, mod="", **kw):
    ops=[str(o) for o in ops]
    text=f"{op} "+", ".join(ops)+((" "+mod) if mod else "")
    vd,sd=parse_opnd(ops[0]); vu=set(); su={"exec"}
    for o in ops[1:]:
        a,b=parse_opnd(o); vu|=a; su|=b
    kind="valu"
    if op.split("_e")[0] in TRANS or op in TRANS: kind="trans"
    if op.startswith("v_permlane"):
        kind="perm"; vd|=vu; vu|=vd
    if op.startswith("v_fmac"): vu|=vd
    if op.startswith("v_readfirstlane") or op.startswith("v_readlane"): kind="rdlane"
    if "partial" in kw:
        kw.pop("partial"); vu|=vd
    return I(text,kind,vd,vu,sd,su,**kw)

def S(op, *ops, **kw):
    ops=[str(o) for o in ops]
    text=f"{op} "+", ".join(ops)
    su=set(); sd=set()
    if op.startswith("s_cmp"):
        srcs=ops; sd={"scc"}
    else:
        _,sd=parse_opnd(ops[0]); srcs=ops[1:]
        if not (op.startswith("s_mov") or op.startswith("s_cselect") or op.startswith("s_mul") ): sd=sd|{"scc"}
    for o in srcs:
        _,b=parse_opnd(o); su|=b
    if op.startswith("s_cselect") or op.startswith("s_addc"): su|={"scc"}
    if op.startswith("s_addk") or op.startswith("s_mulk"): su|=sd
    return I(text,"salu",(),(),sd,su,**kw)

def MF(d,a,b,c=None,**kw):
    cs = "0" if c is None else vr(c,4)
    ins=I(f"v_mfma_f32_16x16x32_bf16 {vr(d,4)}, {vr(a,4)}, {vr(b,4)}, {cs}","mfma",R(d,4),
          R(a,4)+R(b,4)+([] if c is None else R(c,4)),(),{"exec"},**kw)
    ins.a=frozenset(R(a,4)); ins.b=frozenset(R(b,4)); ins.c=frozenset([] if c is None else R(c,4)); ins.d=frozenset(R(d,4))
    return ins

def DSR(op,d,n,addr,off=0,**kw):
    assert 0<=off<65536, off
    return I(f"{op} {vr(d,n)}, v{addr}"+(f" offset:{off}" if off else ""),"dsr",R(d,n),[addr],(),{"exec"},**kw)
def DSW(op,addr,s,n,off=0,**kw):
    assert 0<=off<65536, off
    return I(f"{op} v{addr}, {vr(s,n)}"+(f" offset:{off}" if off else ""),"dsw",(),[addr]+R(s,n),(),{"exec"},**kw)
def DMA(voff,srd,soff,off=0,flags="",**kw):
    _,ss=parse_opnd(str(soff))
    return I(f"buffer_load_dwordx4 v{voff}, {sr(srd,4)}, {soff} offen"+(f" offset:{off}" if off else "")+(" "+flags if flags else "")+" lds","dma",(),[voff],(),set(R(srd,4))|ss|{"m0","exec"},**kw)
def VLD(op,d,n,voff,srd,soff=0,off=0,**kw):
    _,ss=parse_opnd(str(soff))
    return I(f"{op} {vr(d,n)}, v{voff}, {sr(srd,4)}, {soff} offen"+(f" offset:{off}" if off else ""),"vld",R(d,n),[voff],(),set(R(srd,4))|ss|{"exec"},**kw)
def VST(op,s,n,voff,srd,soff=0,off=0,flags="",**kw):
    _,ss=parse_opnd(str(soff))
    return I(f"{op} {vr(s,n)}, v{voff}, {sr(srd,4)}, {soff} offen"+(f" offset:{off}" if off else "")+(" "+flags if flags else ""),"vst",(),[voff]+R(s,n),(),set(R(srd,4))|ss|{"exec"},wide=(n>2),**kw)
def BAR(k,**kw): return I("s_barrier","bar",bar=k,**kw)
def RAW(text,**kw): return I(text,"raw",**kw)

_lbl=[0]
def MACRO(cond_ins, branch_op, body, **kw):
    vd=set();vu=set();sd=set();su=set()
    for i in cond_ins+body:
        vd|=i.vd; vu|=i.vu; sd|=i.sd; su|=i.su
    vu|=vd
    m=I("<macro>","macro",vd,vu,sd|{"scc"},su,**kw)
    m.body=body; m.cond=(cond_ins,branch_op)
    af=[i.after for i in body if i.after is not None]; bf=[i.before for i in body if i.before is not None]
    m.after=max(af) if af else None; m.before=min(bf) if bf else None
    return m

COST={"mfma":8,"trans":8,"valu":4,"perm":4,"rdlane":4,"dsr":4,"dsw":4,"dma":8,"vld":4,"vst":8,"salu":4,"bar":4,"raw":4}
LDS_LAT=140
def macro_cost(m): return sum(16 if i.kind=="mfma" else COST[i.kind] for i in m.body)+LDS_LAT

def lat(p,c,raw_v,war_v,waw_v,raw_s):
    k=p.kind
    if k=="macro": return macro_cost(p)
    if raw_v or waw_v:
        if k=="mfma":
            if c.kind=="mfma" and c.c==p.d and not (p.d&(c.a|c.b)): return 16
            return 40
        if k=="dsr": return LDS_LAT
        if k=="vld": return 2000
        if k in("valu","trans","perm"):
            base=COST[k]
            if c.kind in("mfma","perm"): return base+8
            if k=="trans": return base+4
            return base
    if raw_s and k in("valu","rdlane"): return 16
    if war_v and k=="mfma" and (p.c&c.vd) and c.kind!="mfma": return 20
    return COST.get(k,4)

def schedule(prog, window=400, mf_gap=16, verbose=False):
    n=len(prog)
    for i,x in enumerate(prog): x.idx=i
    preds=[[] for _ in range(n)]; succs=[[] for _ in range(n)]
    lastw_v={}; readers_v={}; lastw_s={}; readers_s={}
    bars={x.bar:x.idx for x in prog if x.kind=="bar"}
    lastbar=None; lastvm=None; lastpin=None
    def edge(p,c,l):
        if p==c: return
        assert p<c,(prog[p],prog[c],p,c)
        preds[c].append((p,l)); succs[p].append(c)
    for i,x in enumerate(prog):
        dep={}
        def add(p,f):
            dep.setdefault(p,set()).add(f)
        for r in x.vu:
            if r in lastw_v: add(lastw_v[r],"raw")
        for r in x.vd:
            if r in lastw_v: add(lastw_v[r],"waw")
            for q in readers_v.get(r,()): add(q,"war")
        for r in x.su:
            if r in lastw_s: add(lastw_s[r],"raws")
        for r in x.sd:
            if r in lastw_s: add(lastw_s[r],"o")
            for q in readers_s.get(r,()): add(q,"o")
        for p,f in dep.items():
            edge(p,i,lat(prog[p],x,"raw" in f,"war" in f,"waw" in f,"raws" in f))
        for r in x.vu: readers_v.setdefault(r,[]).append(i)
        for r in x.vd: lastw_v[r]=i; readers_v[r]=[]
        for r in x.su: readers_s.setdefault(r,[]).append(i)
        for r in x.sd: lastw_s[r]=i; readers_s[r]=[]
        if x.kind=="bar":
            if lastbar is not None: edge(lastbar,i,4)
            lastbar=i
        if x.kind in("dma","vld","vst"):
            if lastvm is not None: edge(lastvm,i,4)
            lastvm=i
        if x.after is not None and x.after in bars: edge(bars[x.after],i,4)
        if x.before is not None and x.before in bars:
            edge(i,bars[x.before], macro_cost(x) if x.kind=="macro" else (LDS_LAT if x.kind in("dsr","dsw") else 4))
        if x.pin:
            for j in range((lastpin or 0),i): edge(j,i,4)
            lastpin=i
        elif lastpin is not None: edge(lastpin,i,4)
    npred=[len(p) for p in preds]
    est=[0]*n
    ready=[i for i in range(n) if npred[i]==0]
    out=[]; t=0; mf_free=0; done=[False]*n; lo=0; stall=0
    while ready:
        while lo<n and done[lo]: lo+=1
        cand=[i for i in ready if i<lo+window]
        def start(i):
            s=max(t,est[i])
            if prog[i].kind=="mfma": s=max(s,mf_free)
            return s
        now=[i for i in cand if start(i)<=t]
        if now:
            def key(i):
                x=prog[i]
                cls=0 if x.kind in("dsr","dma","vld") else (1 if x.kind=="mfma" else 2)
                return (cls if x.kind in("dsr","mfma") else 2, i-x.prio)
            pick=min(now,key=key)
        else:
            pick=min(cand,key=lambda i:(start(i),i))
            stall+=start(pick)-t
            t=start(pick)
        x=prog[pick]
        out.append(x); done[pick]=True; ready.remove(pick)
        x.note=t
        if x.kind=="mfma": mf_free=t+mf_gap
        for c in succs[pick]:
            npred[c]-=1
        for c in set(succs[pick]):
            for (p,l) in preds[c]:
                if p==pick: est[c]=max(est[c],t+l)
            if npred[c]==0 and not done[c] and c not in ready: ready.append(c)
        t+= macro_cost(x) if x.kind=="macro" else COST[x.kind]
    assert len(out)==n,(len(out),n)
    if verbose: print(f"scheduled {n} instrs, model time {t}, stall {stall}")
    return out

class Out:
    def __init__(s): s.items=[]
def flatten(seq, prefix):
    res=[]
    for x in seq:
        if x.kind=="macro":
            _lbl[0]+=1; name=f"L_{prefix}_{_lbl[0]}"
            for c in x.cond[0]: res.append((c,None))
            br=I(f"{x.cond[1]} {name}","salu",su={"scc","vcc"}); res.append((br,None))
            for b in x.body: res.append((b,name))
            res.append((I(f"{name}:","label"),None))
        else: res.append((x,None))
    return res

def insert_waits(flat):
    res=[]; lq=[]; vq=[]
    cur=None; saved=None
    def need(q,pred,seg):
        N=None
        for k in range(len(q)-1,-1,-1):
            if pred(q[k][0]):
                N=sum(1 for e in q[k+1:] if e[1] is None or e[1]==seg); break
        return N
    def retire(q,N,seg):
        keep=[]
        for k,e in enumerate(q):
            y=sum(1 for f in q[k+1:] if f[1] is None or f[1]==seg)
            if y<N: keep.append(e)
        return keep
    for ins,seg in flat:
        if seg!=cur:
            if cur is not None:
                lq=saved[0]+[e for e in lq if e[1]==cur]; vq=saved[1]+[e for e in vq if e[1]==cur]
            if seg is not None: saved=(list(lq),list(vq))
            cur=seg
        touch=ins.vu|ins.vd
        if ins.kind=="bar":
            pl=lambda o:o.before is not None and o.before<=ins.bar
            pv=pl
        else:
            pl=lambda o:bool(o.vd&touch); pv=pl
        nl=need(lq,pl,seg); nv=need(vq,pv,seg)
        if ins.vmwait is not None: nv=ins.vmwait if nv is None else min(nv,ins.vmwait)
        w=[]
        if nv is not None:
            nv=min(nv,63); w.append(f"vmcnt({nv})"); vq=retire(vq,nv,seg)
        if nl is not None:
            nl=min(nl,15); w.append(f"lgkmcnt({nl})"); lq=retire(lq,nl,seg)
        if w: res.append((I("s_waitcnt "+" ".join(w),"wait"),seg))
        res.append((ins,seg))
        if ins.kind in("dsr","dsw"): lq.append((ins,seg))
        if ins.kind in("dma","vld","vst"): vq.append((ins,seg))
    return res

VALU=("valu","trans","perm","rdlane")
def hazard(p,c):
    w=0
    if p.kind=="mfma":
        if c.kind=="mfma":
            if p.d&(c.a|c.b): w=max(w,8)
            if p.d&c.c and p.d!=c.c: w=max(w,6)
            if p.d&c.d and p.d!=c.c: w=max(w,6)
        elif c.kind in VALU:
            if p.d&(c.vu|c.vd): w=max(w,8)
            if p.c&c.vd: w=max(w,3)
        elif c.kind in("dsr","dsw","dma","vld","vst"):
            if p.d&(c.vu|c.vd): w=max(w,8)
            if p.c&c.vd: w=max(w,3)
    if p.kind in VALU:
        if c.kind=="mfma":
            if p.vd&c.vu: w=max(w,2)
            if "exec" in p.sd: w=max(w,4)
        if c.kind=="perm" and p.vd&c.vu: w=max(w,2)
        if c.kind=="rdlane" and p.vd&c.vu: w=max(w,1)
        if p.kind=="trans" and c.kind in VALU and p.vd&c.vu: w=max(w,1)
        if p.sd:
            if c.kind in VALU and (p.sd&c.su): w=max(w,2)
            if c.kind in("dma","vld","vst") and (p.sd&c.su): w=max(w,5)
            if c.kind=="salu" and (p.sd&c.su): w=max(w,1)
    if p.kind=="salu" and "m0" in p.sd and c.kind=="dma": w=max(w,1)
    if p.kind=="vst" and p.wide and (p.vu&c.vd): w=max(w,2)
    return w

def states(i):
    if i.kind=="label": return 0
    if i.text.startswith("s_nop"): return int(i.text.split()[1])+1
    return 1

def insert_nops(flat):
    res=[]
    segstart={}
    for ins,seg in flat:
        if seg is not None and seg not in segstart: segstart[seg]=len(res)
        needn=0
        if ins.kind not in("label","wait","bar"):
            stack=[(len(res)-1,0)]
            while stack:
                k,dist=stack.pop()
                while k>=0 and dist<10:
                    p,pseg=res[k]
                    if p.kind=="label":
                        nm=p.text[:-1]
                        if nm in segstart: stack.append((segstart[nm]-1,dist))
                    else:
                        h=hazard(p,ins)
                        if h>dist: needn=max(needn,h-dist)
                    dist+=states(p); k-=1
        if needn: res.append((I(f"s_nop {needn-1}","nop"),seg))
        res.append((ins,seg))
    return res

def emit(flat, notes=True):
    lines=[]
    for ins,seg in flat:
        if ins.kind=="label": lines.append(ins.text)
        else: lines.append("    "+ins.text)
    return "\n".join(lines)
```

```python
import sys, struct, math
from asmlib import *
import asmlib

NAME="standalone__neighborhood_dinat__vision"
OPT=dict(store_flags="", x_flags="", pk=True, window=400, mf_gap=16, thr=2.0**64, dump=None, force_safe=False)
for a in sys.argv[2:]:
    k,v=a.split("="); OPT[k]=eval(v)

def f32(x): return "0x%08x"%struct.unpack("<I",struct.pack("<f",x))[0]
LOG2E=math.log2(math.e)
QSCALE=24**-0.5*LOG2E

RB=76800; HB=7936; BS=4*HB+656; ONES=RB+4*HB; WB=RB; TB=RB+55296; WOB=RB+2*BS; FLAG=WOB+18432; LDS_TOTAL=163840
assert FLAG+16<=LDS_TOTAL and TB+4096<=RB+BS+4*HB
aX,aKw,aVw,aKr0,aKr1,aV00,aV01,aV10,aV11,tmax,qs,aQx0=range(12)
aOr=qs; aS2=aQx0
WKV=12; WQO=48; BIAS=84; QB=116; OB=140; KB=172; VB=188; SB=196; PB=212; XA=220; XB=232; ACC=244
assert ACC+12==256
aQx1=BIAS+7; aOw1=BIAS+15; aOw2=BIAS+23; aS1=BIAS+31
aKr=[aKr0,aKr1]; aV0=[aV00,aV01]; aV1=[aV10,aV11]; aQx=[aQx0,aQx1]
def Qr(s): return WQO+24 if s==0 else QB+4*(s-1)
Cb=WQO+28; Cc=WQO+32; Ca=OB+24
def Or(s): return OB+8*(s%4)
def Wkv(n,ks): return WKV+12*n+4*ks
def Wq(n,ks): return WQO+12*n+4*ks
sX=16; sW=20; sR=24; sO=28
sw,sh,ssg,sstr,srb,sr0,sc0,stop=36,37,38,39,40,41,42,43
sm20,s384,s3277,sflip,sjb,sty,stx=44,45,46,47,48,49,50
st0,st1,st2,st3=52,53,54,55
sSO=56
sMa,sMb,sMc,sMd=60,62,64,66
sA,sB=68,69
sdOr=70; snh=71

def common_setup():
    p=[]
    p+=[V("v_lshrrev_b32","v1",6,"v0"), V("v_readfirstlane_b32",sr(sw),"v1")]
    for b,n in ((sX,9633792),(sR,1352),(sO,9633792)):
        p+=[S("s_mov_b32",sr(b+2),n), S("s_mov_b32",sr(b+3),"0x00020000")]
    p+=[S("s_mov_b32",sr(sW+3),"0x00020000")]
    p+=[S("s_lshr_b32",sr(st0),"s2",3),
        S("s_bfe_u32",sr(stx),sr(st0),"0x20001"),
        S("s_and_b32",sr(st1),"s2",4),
        S("s_or_b32",sr(stx),sr(stx),sr(st1)),
        S("s_lshr_b32",sr(sty),sr(st0),3),
        S("s_and_b32",sr(st1),"s2",2),
        S("s_lshl_b32",sr(st1),sr(st1),1),
        S("s_or_b32",sr(sty),sr(sty),sr(st1)),
        S("s_and_b32",sr(st2),"s2",1),
        S("s_and_b32",sr(st3),sr(st0),1),
        S("s_mul_i32",sr(st3),sr(st3),192),
        S("s_cmp_eq_u32",sr(sty),7),
        S("s_cselect_b32",sr(sflip),1,0),
        S("s_cselect_b32",sr(sty),0,sr(sty)),
        S("s_cselect_b32",sr(st1),222,0),
        S("s_mov_b32",sr(sstr),86016),
        S("s_cselect_b32",sr(sstr),-86016,sr(sstr)),
        S("s_add_u32",sr(st1),sr(st1),sr(st2)),
        S("s_mul_i32",sr(srb),sr(st1),43008),
        S("s_add_u32",sr(srb),sr(srb),sr(st3)),
        S("s_mul_i32",sr(sr0),sr(sty),14),
        S("s_sub_u32",sr(sr0),sr(sr0),3),
        S("s_mul_i32",sr(sc0),sr(stx),14),
        S("s_sub_u32",sr(sc0),sr(sc0),3),
        S("s_mov_b32",sr(sm20),-20), S("s_movk_i32",sr(s384),384), S("s_movk_i32",sr(s3277),3277),
        S("s_and_b32",sr(sh),sr(sw),3), S("s_lshr_b32",sr(ssg),sr(sw),2),
    ]
    return p

def body(safe):
    P=[]
    T=list(range(OB,OB+24))+list(range(KB,KB+24))+list(range(SB,SB+24))
    ti=iter(T)
    lane,li,lg,gb,pv,ta,tb,tc=[next(ti) for _ in range(8)]
    v=lambda r:f"v{r}"
    s=lambda r:f"s{r}"
    P+=[V("v_mbcnt_lo_u32_b32",v(lane),-1,0), V("v_mbcnt_hi_u32_b32",v(lane),-1,v(lane)),
        V("v_and_b32",v(li),15,v(lane)), V("v_lshrrev_b32",v(lg),4,v(lane)),
        V("v_lshl_add_u32",v(gb),v(lg),4,s(srb)),
        S("s_lshl_b32",s(st0),s(sw),4), V("v_add_u32",v(pv),s(st0),v(li))]
    def xaddr(dst,padd,first,pbase):
        q=[]
        if padd: q+=[V("v_add_u32",v(ta),padd,v(pbase))]; pp=ta
        else: pp=pbase
        q+=[V("v_mul_u32_u24",v(tb),s(s3277),v(pp)), V("v_lshrrev_b32",v(tb),16,v(tb)),
            V("v_mad_i32_i24",v(tc),v(tb),s(sm20),v(pp)), V("v_add_u32",v(tc),s(sc0),v(tc)),
            V("v_max_i32",v(tc),0,v(tc)), V("v_min_i32",v(tc),111,v(tc)),
            V("v_add_u32",v(tb),s(sr0),v(tb))]
        if first: q+=[V("v_and_b32",v(dst),7,v(tb)), V("v_max_i32",v(tb),v(tb),v(dst))]
        q+=[V("v_mad_u32_u24",v(tc),v(tc),s(s384),v(gb)), V("v_mad_i32_i24",v(dst),v(tb),s(sstr),v(tc))]
        return q
    xa=[next(ti) for _ in range(4)]
    P+=xaddr(xa[0],0,True,pv)
    w1,w2,l4,cc=[next(ti) for _ in range(4)]
    P+=[V("v_lshrrev_b32",v(l4),2,v(lane)), V("v_and_b32",v(cc),3,v(lane)),
        V("v_and_b32",v(ta),2,v(lg)), V("v_xor_b32",v(ta),v(ta),v(cc)), V("v_lshlrev_b32",v(ta),4,v(ta)),
        V("v_mul_u32_u24",v(w1),576,v(l4)), V("v_add_u32",v(w1),v(w1),v(ta)), V("v_xor_b32",v(w2),16,v(w1))]
    wo_body=[V("v_lshlrev_b32",v(ta),4,v(cc)), V("v_mul_u32_u24",v(w1),192,v(l4)), V("v_add_u32",v(w1),v(w1),v(ta)),
        V("v_bfe_u32",v(tb),v(lane),3,1), V("v_mul_u32_u24",v(tb),24,v(tb)),
        V("v_bfe_u32",v(tc),v(lane),2,1), V("v_add3_u32",v(tb),v(tb),v(tc),20),
        V("v_bfe_u32",v(tc),v(lane),4,1), V("v_mad_i32_i24",v(tb),v(tc),-4,v(tb)),
        V("v_bfe_u32",v(tc),v(lane),5,1), V("v_lshl_add_u32",v(tb),v(tc),1,v(tb)),
        V("v_mul_u32_u24",v(w2),192,v(tb)), V("v_add_u32",v(w2),v(w2),v(ta))]
    P+=[MACRO([S("s_cmp_lt_u32",s(sw),6)],"s_cbranch_scc1",wo_body)]
    P+=[S("s_sub_u32",s(st1),s(sw),6), S("s_cmp_lt_u32",s(sw),6),
        S("s_cselect_b32",s(st1),s(sw),s(st1)),
        S("s_mov_b32",s(st2),WOB), S("s_cselect_b32",s(st2),WB,s(st2)),
        S("s_movk_i32",s(sA),4608), S("s_cselect_b32",s(sA),192,s(sA)),
        S("s_cselect_b32",s(sB),s(s384),0),
        S("s_movk_i32",s(sW+2),18432), S("s_cselect_b32",s(sW+2),55296,s(sW+2)),
        S("s_mul_i32",s(st1),s(st1),9216),
        S("s_add_u32",s(st2),s(st2),s(st1)),
        S("s_add_u32",s(sA),s(sA),s(st1)), S("s_add_u32",s(sB),s(sB),s(st1)),
        S("s_mul_i32",s(st3),s(sw),3072)]
    if not safe:
        P+=[RAW("s_waitcnt lgkmcnt(0)",pin=True)]
    P+=[S("s_cmp_lt_u32",s(sw),6), S("s_cselect_b64",sr(sW,2),"s[4:5]","s[6:7]")]
    def xdma(m,bk):
        q=[]
        for ks in range(3):
            q+=[S("s_add_u32","m0",s(st3),24576*m+960*ks), DMA(xa[m],sX,0,64*ks,flags=OPT["x_flags"],before=bk)]
        return q
    P+=xdma(0,1)
    for t in range(9):
        P+=[S("s_add_u32","m0",s(st2),1024*t-64*(t%3)), DMA(w1 if t<6 else w2,sW,s([st1,sA,sB][t//3]),64*(t%3),before=1)]
    rb0,rb1,re=[next(ti) for _ in range(3)]
    P+=[S("s_lshl_b32",s(st0),s(ssg),2), V("v_add_u32",v(re),s(st0),v(lg)),
        S("s_mul_i32",s(st0),s(sh),338),
        S("s_cmp_eq_u32",s(sflip),1), S("s_cselect_b32",s(st1),-26,26), S("s_cselect_b32",s(st2),312,0),
        S("s_add_u32",s(st0),s(st0),s(st2)),
        V("v_lshl_add_u32",v(ta),v(li),1,s(st0)), V("v_mad_i32_i24",v(ta),v(re),s(st1),v(ta)),
        S("s_lshl_b32",s(st1),s(st1),3), V("v_add_u32",v(tb),s(st1),v(ta)),
        VLD("buffer_load_ushort",rb0,1,ta,sR), VLD("buffer_load_ushort",rb1,1,tb,sR)]
    P+=xaddr(xa[1],128,False,pv)+xdma(1,3)
    P+=xaddr(xa[2],256,False,pv)+xdma(2,4)
    P+=xaddr(xa[3],384,False,li)
    P+=[S("s_mul_i32",s(st0),s(sw),43), S("s_lshr_b32",s(st0),s(st0),7), S("s_mul_i32",s(st0),s(st0),3),
        S("s_sub_u32",s(st0),s(sw),s(st0)), S("s_lshl_b32",s(st1),s(st0),6), S("s_lshl_b32",s(st0),s(st0),10),
        S("s_add_u32","m0",s(st0),73728), DMA(xa[3],sX,s(st1),0,flags=OPT["x_flags"],before=4)]
    l16=next(ti)
    P+=[V("v_lshlrev_b32",v(l16),4,v(lane)),
        S("s_mul_i32",s(st0),s(ssg),3072), V("v_add_u32",v(aX),s(st0),v(l16)),
        S("s_lshr_b32",s(st1),s(sh),1), S("s_lshl_b32",s(st1),s(st1),10), S("s_and_b32",s(st2),s(sh),1), S("s_lshl_b32",s(st2),s(st2),3),
        S("s_add_u32",s(st1),s(st1),s(st2)), V("v_add_u32",v(aOw1),s(st1),v(aX)),
        S("s_lshl_b32",s(st1),s(sh),2), S("s_add_u32",s(st1),s(st1),2048), V("v_add_u32",v(aOw2),s(st1),v(aX)),
        S("s_lshr_b32",s(st1),s(sw),1), S("s_mul_i32",s(st1),s(st1),3072), S("s_sub_u32",s(sdOr),s(st1),s(st0)), S("s_sub_u32",s(sdOr),s(sdOr),30720),
        S("s_and_b32",s(snh),s(sw),1),
        S("s_mul_i32",s(st3),s(sh),HB), S("s_add_u32",s(st3),s(st3),RB)]
    g1280,c704=next(ti),next(ti)
    P+=[V("v_mul_u32_u24",v(g1280),1280,v(lg)),
        S("s_lshl_b32",s(st0),s(ssg),8), S("s_add_u32",s(st0),s(st0),s(st3)),
        V("v_lshl_add_u32",v(ta),v(li),4,s(st0)), V("v_add_u32",v(aKw),v(ta),v(g1280)),
        S("s_lshl_b32",s(st0),s(ssg),7), S("s_add_u32",s(st0),s(st0),s(st3)), S("s_add_u32",s(st0),s(st0),5120),
        V("v_lshl_add_u32",v(ta),v(li),3,s(st0)), V("v_mul_u32_u24",v(tb),704,v(lg)), V("v_add_u32",v(aVw),v(ta),v(tb)),
        V("v_mul_u32_u24",v(c704),704,v(cc))]
    OFF1=[20,21,32,1,22,23,2,3,24,25,28,29,26,27,30,31]
    k=[sum(OFF1[4*a+b]<<(8*b) for b in range(4)) for a in range(4)]
    kv=[next(ti) for _ in range(4)]
    P+=[V("v_mov_b32",v(kv[a]),"0x%08x"%k[a]) for a in range(4)]
    def off_of(dst0,dst1,x):
        return [V("v_add_u32",v(ta),3,v(x)), V("v_and_b32",v(ta),16,v(ta)), V("v_add_u32",v(dst0),v(ta),v(x)),
                V("v_and_b32",v(ta),7,v(x)), V("v_or_b32",v(ta),"0x0c0c0c00",v(ta)),
                V("v_perm_b32",v(tb),v(kv[1]),v(kv[0]),v(ta)), V("v_perm_b32",v(tc),v(kv[3]),v(kv[2]),v(ta)),
                V("v_cmp_gt_u32","vcc",8,v(x)), V("v_cndmask_b32",v(dst1),v(tc),v(tb),"vcc")]
    o0,o1=next(ti),next(ti)
    P+=off_of(o0,o1,li)
    P+=[S("s_mul_i32",s(st0),s(ssg),112), S("s_add_u32",s(st0),s(st0),s(st3)), V("v_add_u32",v(g1280),s(st0),v(g1280)),
        V("v_lshl_add_u32",v(aKr0),v(o0),4,v(g1280)), V("v_lshl_add_u32",v(aKr1),v(o1),4,v(g1280))]
    P+=off_of(o0,o1,l4)
    P+=[S("s_mul_i32",s(st1),s(ssg),56), S("s_add_u32",s(st1),s(st1),s(st3)), S("s_add_u32",s(st1),s(st1),5120),
        V("v_add_u32",v(c704),s(st1),v(c704)),
        V("v_lshl_add_u32",v(aV00),v(o0),3,v(c704)), V("v_lshl_add_u32",v(aV01),v(o1),3,v(c704)),
        S("s_add_u32",s(st0),s(st0),3840), V("v_lshl_add_u32",v(ta),v(cc),3,s(st0)),
        V("v_lshl_add_u32",v(aV10),v(o0),4,v(ta)), V("v_lshl_add_u32",v(aV11),v(o1),4,v(ta)),
        V("v_mov_b32",v(tb),ONES), V("v_cmp_gt_u32","vcc",2,v(cc)),
        V("v_cndmask_b32",v(aV10),v(tb),v(aV10),"vcc"), V("v_cndmask_b32",v(aV11),v(tb),v(aV11),"vcc")]
    qr,qc=next(ti),next(ti)
    P+=[V("v_min_u32",v(ta),13,v(li)), V("v_add_u32",v(qr),9,v(ta)), V("v_lshrrev_b32",v(qr),4,v(qr)),
        V("v_mad_i32_i24",v(qc),v(qr),-7,v(ta))]
    P+=[S("s_mul_i32",s(st0),s(ssg),7), S("s_add_u32",s(st1),s(st0),63),
        V("v_mad_u32_u24",v(ta),v(qr),20,v(qc)), V("v_add_u32",v(ta),s(st1),v(ta))]
    for par in range(2):
        if par: P+=[V("v_add_u32",v(ta),40,v(ta))]
        P+=[V("v_lshrrev_b32",v(tb),4,v(ta)), V("v_mul_u32_u24",v(tb),3072,v(tb)), V("v_and_b32",v(tc),15,v(ta)),
            V("v_lshl_add_u32",v(tb),v(tc),4,v(tb)), V("v_lshl_add_u32",v(aQx[par]),v(lg),8,v(tb))]
    P+=[V("v_mov_b32",v(ta),f32(QSCALE)), V("v_cmp_gt_u32","vcc",3,v(lg)), V("v_cndmask_b32",v(qs),0,v(ta),"vcc"),
        V("v_mov_b32",v(tmax),0)]
    P+=[S("s_add_u32",s(sjb),s(sc0),s(st0)), S("s_add_u32",s(sjb),s(sjb),3)]
    P+=[S("s_bfe_u32",s(st0),s(sw),"0x10001"), S("s_mul_i32",s(st0),s(st0),7), S("s_add_u32",s(st0),s(st0),s(sc0)), S("s_add_u32",s(st0),s(st0),3),
        V("v_add_u32",v(ta),s(st0),v(qc)),
        S("s_mul_i32",s(st1),s(snh),96), V("v_add_u32",v(tb),s(st1),v(gb)),
        V("v_mad_u32_u24",v(ta),v(ta),s(s384),v(tb)),
        S("s_mul_i32",s(st1),s(sflip),12), S("s_add_u32",s(st1),s(st1),s(sr0)), S("s_add_u32",s(st1),s(st1),3),
        V("v_add_u32",v(tb),s(st1),v(qr)), V("v_mad_i32_i24",v(ta),v(tb),s(sstr),v(ta)),
        V("v_mov_b32",v(tb),"0x80000000"), V("v_cmp_gt_u32","vcc",14,v(li)), V("v_cndmask_b32",v(aS1),v(tb),v(ta),"vcc")]
    for k4 in range(4):
        P+=[S("s_add_u32",s(st0),s(ssg),2*k4-1) if k4 else S("s_mov_b32",s(st0),0),
            S("s_sub_u32",s(st1),6,s(st0)), S("s_cmp_eq_u32",s(sflip),1), S("s_cselect_b32",s(st0),s(st1),s(st0)),
            S("s_mul_i32",s(sSO+k4),s(st0),172032)]
    wa,wb_,wc,wqa,wqb,rp,g02=[next(ti) for _ in range(7)]
    P+=[V("v_lshrrev_b32",v(ta),5,v(lane)), V("v_mul_u32_u24",v(rp),9216,v(ta)),
        V("v_bfe_u32",v(ta),v(lane),4,1), V("v_lshlrev_b32",v(g02),1,v(ta)),
        V("v_lshl_add_u32",v(rp),v(ta),9,v(rp)), V("v_bfe_u32",v(ta),v(lane),2,2), V("v_lshl_add_u32",v(rp),v(ta),6,v(rp)),
        V("v_add_u32",v(rp),WB,v(rp)), S("s_mul_i32",s(st0),s(sh),3)]
    def waddr(dst,u,tw,half):
        q=[V("v_lshrrev_b32",v(tb),2,v(u)), V("v_lshl_add_u32",v(dst),v(tb),10,v(rp)),
           V("v_and_b32",v(tb),3,v(u)), V("v_xor_b32",v(tb),v(tb),v(g02))]
        if tw==1: q+=[V("v_xor_b32",v(tb),1,v(tb))]
        elif tw is not None: q+=[V("v_xor_b32",v(tb),v(tb),v(tw))]
        q+=[V("v_lshl_add_u32",v(dst),v(tb),4,v(dst)), V("v_lshl_add_u32",v(dst),v(half),3,v(dst))]
        return q
    c1,c3=next(ti),next(ti)
    P+=[V("v_lshrrev_b32",v(c1),1,v(cc)), V("v_and_b32",v(c3),v(c1),v(cc)),
        V("v_add_u32",v(ta),s(st0),v(cc))]
    P+=waddr(wqa,ta,None,c1)+[V("v_xor_b32",v(wqb),8,v(wqa))]
    P+=[V("v_mad_u32_u24",v(ta),v(c3),11,v(ta)), V("v_add_u32",v(ta),12,v(ta))]
    P+=waddr(wa,ta,c3,c1)+[V("v_xor_b32",v(wb_),8,v(wa))]
    P+=[V("v_add_u32",v(ta),s(st0),v(c1)), V("v_add_u32",v(ta),24,v(ta)), V("v_and_b32",v(tc),1,v(cc))]
    P+=waddr(wc,ta,1,tc)
    ba=[next(ti) for _ in range(7)]
    lo,base0,qc3,g3,ninf=[next(ti) for _ in range(5)]
    P+=[S("s_sub_u32",s(st0),s(sjb),3), V("v_add_u32",v(ta),s(st0),v(qc)), V("v_max_i32",v(ta),0,v(ta)), V("v_min_i32",v(ta),105,v(ta)),
        V("v_subrev_u32",v(lo),s(st0),v(ta)),
        S("s_lshl_b32",s(st0),s(sh),10), S("s_add_u32",s(st0),s(st0),TB+192),
        V("v_lshlrev_b32",v(ta),6,v(qr)), V("v_sub_u32",v(base0),s(st0),v(ta)),
        V("v_sub_u32",v(qc3),3,v(qc)),
        V("v_lshrrev_b32",v(g3),1,v(lg)), V("v_and_b32",v(g3),v(g3),v(lg)),
        V("v_mov_b32",v(ninf),"0xff800000")]
    for j in range(7):
        t,r=divmod(j,4)
        if t==0:
            if r==0: P+=[V("v_lshlrev_b32",v(ta),2,v(lg))]
            else: P+=[V("v_sub_u32",v(ta),v(lg),v(g3)), V("v_lshl_add_u32",v(ta),v(ta),2,r)]
        elif r<2: P+=[V("v_lshl_add_u32",v(ta),v(lg),1,r)]
        else: P+=[V("v_lshlrev_b32",v(tb),3,v(lg)), V("v_lshrrev_b32",v(ta),v(tb),v(kv[0])) , V("v_and_b32",v(ta),255,v(ta))]
        if j==5: P+=[V("v_mov_b32",v(kv[0]),"0x6408640c")]
        P+=[V("v_sub_u32",v(tb),v(ta),v(lo)), V("v_add_u32",v(ta),v(ta),v(qc3)), V("v_cmp_gt_u32","vcc",7,v(tb)),
            V("v_cndmask_b32",v(ta),13,v(ta),"vcc"), V("v_lshl_add_u32",v(ba[j]),v(ta),2,v(base0))]
        if t==0 and r>0: P+=[V("v_lshl_add_u32",v(ba[j]),v(g3),6,v(ba[j]))]
    P+=[S("s_lshl_b32",s(st0),s(sh),10), S("s_lshl_b32",s(st1),s(ssg),8), S("s_add_u32",s(st0),s(st0),s(st1)), S("s_add_u32",s(st0),s(st0),TB),
        V("v_lshl_add_u32",v(re),v(lane),2,s(st0)), V("v_cmp_gt_u32","vcc",13,v(li))]
    for m,rb in enumerate((rb0,rb1)):
        P+=[V("v_lshlrev_b32",v(rb),16,v(rb)), V("v_mul_f32",v(rb),f32(LOG2E),v(rb)), V("v_cndmask_b32",v(rb),v(ninf),v(rb),"vcc"),
            DSW("ds_write_b32",re,rb,1,512*m,before=1)]
    P+=[V("v_mov_b32",v(tb),FLAG), DSW("ds_write_b32",tb,tmax,1,0,before=1)]
    P+=[BAR(1)]
    for n,ad in enumerate((wa,wb_,wc)):
        for ks in range(3):
            for e in range(2):
                P+=[DSR("ds_read_b64_tr_b16",Wkv(n,ks)+2*e,2,ad,ks*18432+e*256,after=1,before=2)]
    xset=[XA,XA] if safe else [XA,XB]
    xi=[0]
    def nextx():
        xi[0]^=1; return xset[xi[0]^1]
    def landed(tile): return 1 if tile<8 else (3 if tile<16 else 4)
    def xreads(X,k,jj2,extra):
        se=1-(k&1)
        t0=5*k+(4-se if extra else 2*jj2)
        bump=30720 if k>=2 else 0
        return [DSR("ds_read_b128",X+4*ks,4,aX,3072*t0+1024*ks-bump,after=landed(min(t0+1,24)),before=k+3) for ks in range(3)]
    def prodcore(X,k,jj2,extra,acc=ACC):
        se=1-(k&1); buf=(k&1)*BS
        q=[]
        for n in range(3):
            for ks in range(3):
                q+=[MF(acc+4*n,Wkv(n,ks),X+4*ks,None if ks==0 else acc+4*n)]
        for j in range(6):
            dst=acc+j if j<4 else acc+4+j
            q+=[V("v_cvt_pk_bf16_f32",v(dst),v(acc+2*j),v(acc+2*j+1))]
        px=(4-se)*16 if extra else 32*jj2
        q+=[DSW("ds_write_b128",aKw,acc,4,buf+px*16,after=k+2,before=k+3), DSW("ds_write_b64",aVw,acc+8,2,buf+px*8,after=k+2,before=k+3)]
        return q
    def prod(k,jj2,acc=ACC):
        X=nextx(); return xreads(X,k,jj2,False)+prodcore(X,k,jj2,False,acc)
    def prodx(k):
        X=nextx(); se=1-(k&1)
        return xreads(X,k,0,True)+[MACRO([S("s_cmp_eq_u32",s(ssg),se)],"s_cbranch_scc0",schedule(prodcore(X,k,0,True)))]
    def mulq(r,src):
        if OPT["pk"]:
            i=V("v_pk_mul_f32",vr(r,2),vr(r,2),vr(src,2),mod="op_sel_hi:[1,0]"); i.vu=i.vu-{src+1}|{r,r+1}
            return [i]
        return [V("v_mul_f32",v(r),v(src),v(r)), V("v_mul_f32",v(r+1),v(src),v(r+1))]
    def qproj(sx,acc=ACC):
        X=nextx(); q=[]
        tl=(99+40*sx)//16
        q+=[DSR("ds_read_b128",X+4*ks,4,aQx[sx&1],(sx>>1)*15360+1024*ks,after=landed(tl),before=3 if sx==0 else 5) for ks in range(3)]
        for n in range(2):
            for ks in range(3): q+=[MF(acc+4*n,Wq(n,ks),X+4*ks,None if ks==0 else acc+4*n)]
        for j in range(4):
            q+=mulq(acc+2*j,qs)+[V("v_cvt_pk_bf16_f32",v(Qr(sx)+j),v(acc+2*j),v(acc+2*j+1))]
        return q
    def kload(p):
        k=p>>1; o=(k&1)*BS+640*(p&1)
        return [DSR("ds_read_b128",KB+8*(p&1)+4*t,4,aKr[t],o,after=k+3,before=k+4) for t in range(2)]
    def vload(p):
        k=p>>1; b=(k&1)*BS
        return ([DSR("ds_read_b64_tr_b16",VB+2*t,2,aV0[t],b+320*(p&1),after=k+3,before=k+4) for t in range(2)]+
                [DSR("ds_read_b64_tr_b16",VB+4+2*t,2,aV1[t],b+640*(p&1),after=k+3,before=k+4) for t in range(2)])
    qi=[0]
    MX=XB; T1,T2=XB+4,XB+5
    def qu(p,sx):
        b=p-sx; qi[0]^=1; Sr=SB+8*qi[0]; Pr=PB+4*qi[0]; O=Or(sx)
        c0,c1_=BIAS+8*b,BIAS+8*b+4
        if (sx,b)==(0,0): c0,c1_=Ca,Ca+4
        if (sx,b)==(0,1): c0=Cb
        if (sx,b)==(1,0): c0=Cc
        K=KB+8*(p&1)
        q=[MF(Sr,K,Qr(sx),c0), MF(Sr+4,K+4,Qr(sx),c1_)]
        if safe:
            m=MX+(sx%4)
            q+=[V("v_max3_f32",v(T1),v(Sr),v(Sr+1),v(Sr+2)), V("v_max3_f32",v(T1),v(T1),v(Sr+3),v(Sr+4)), V("v_max3_f32",v(T1),v(T1),v(Sr+5),v(Sr+6)),
                V("v_mov_b32",v(T2),v(T1)), V("v_permlane32_swap_b32",v(T1),v(T2)), V("v_max_f32",v(T1),v(T1),v(T2)),
                V("v_mov_b32",v(T2),v(T1)), V("v_permlane16_swap_b32",v(T1),v(T2))]
            if b==0: q+=[V("v_max_f32",v(m),v(T1),v(T2))]
            else:
                q+=[V("v_max3_f32",v(T1),v(T1),v(T2),v(m)), V("v_sub_f32",v(T2),v(m),v(T1)), V("v_exp_f32",v(T2),v(T2)), V("v_mov_b32",v(m),v(T1))]
                q+=[V("v_mul_f32",v(O+j),v(T2),v(O+j)) for j in range(8)]
            q+=[V("v_sub_f32",v(Sr+j),v(Sr+j),v(m)) for j in range(7)]
        for j in range(7):
            q+=[V("v_exp_f32",v(Sr+j),v(Sr+j))]
            if j&1: q+=[V("v_cvt_pk_bf16_f32",v(Pr+j//2),v(Sr+j-1),v(Sr+j))]
        q+=[V("v_cvt_pk_bf16_f32",v(Pr+3),v(Sr+6),0)]
        q+=[MF(O,VB,Pr,None if b==0 else O), MF(O+4,VB+4,Pr,None if b==0 else O+4)]
        return q
    def norm(sx):
        O=Or(sx); bk={0:5,1:6,2:6,3:7,4:7,5:8,6:8}[sx]
        q=[V("v_permlane32_swap_b32",v(O+4),v(O+6)), V("v_permlane32_swap_b32",v(O+5),v(O+7)), V("v_rcp_f32",v(O+6),v(O+6))]
        if not safe: q+=[V("v_max3_f32",v(tmax),v(tmax),v(O+6),v(O+7))]
        for j in range(3):
            q+=mulq(O+2*j,O+6)+[V("v_cvt_pk_bf16_f32",v(O+j),v(O+2*j),v(O+2*j+1))]
        q+=[DSW("ds_write_b64",aOw1,O,2,(2*sx+2)*3072,after=bk-1,before=bk), DSW("ds_write_b32",aOw2,O+2,1,(2*sx+2)*3072,after=bk-1,before=bk)]
        return q
    def oreads(X,k4): return [DSR("ds_read_b128",X+4*ks,4,aOr,4*k4*3072+1024*ks,after=k4+5) for ks in range(3)]
    def outcore(X,k4,acc=ACC):
        q=[]
        for n in range(3):
            for ks in range(3): q+=[MF(acc+4*n,Wq(n,ks),X+4*ks,None if ks==0 else acc+4*n)]
        for j in range(6):
            dst=acc+j if j<4 else acc+4+j
            q+=[V("v_cvt_pk_bf16_f32",v(dst),v(acc+2*j),v(acc+2*j+1))]
        q+=[VST("buffer_store_dwordx4",acc,4,aS1,sO,s(sSO+k4),0,flags=OPT["store_flags"]),
            VST("buffer_store_dwordx2",acc+8,2,aS2,sO,s(sSO+k4),64,flags=OPT["store_flags"])]
        return q
    def outp(k4):
        X=nextx()
        if k4==0:
            return oreads(X,0)+[MACRO([S("s_cmp_eq_u32",s(ssg),1)],"s_cbranch_scc0",schedule(outcore(X,0)))]
        return oreads(X,k4)+outcore(X,k4)
    p0=prod(0,0)
    P+=p0[:3]
    for n,ad in enumerate((wqa,wqb)):
        for ks in range(3):
            for e in range(2):
                P+=[DSR("ds_read_b64_tr_b16",Wq(n,ks)+2*e,2,ad,ks*18432+e*256,after=1,before=2)]
    P+=p0[3:-2]
    P+=[BAR(2)]
    P+=p0[-2:]
    P+=[V("v_mov_b32",v(kv[0]),"0x3f803f80"), V("v_mov_b32",v(kv[1]),"0x3f803f80"), V("v_mov_b32",v(tb),ONES)]
    assert kv[0]%2==0 and kv[1]==kv[0]+1
    for o in (0,640,BS,BS+640): P+=[DSW("ds_write_b64",tb,kv[0],2,o,after=2,before=3)]
    P+=prod(0,1)
    for b in range(5):
        for j in range(7):
            rho=64 if j>=4 else 0
            P+=[DSR("ds_read_b32",(BIAS+8*b if b<4 else Ca)+j,1,ba[j],128*b+rho,after=1,before=3)]
    P+=qproj(0)
    def setm(r,lo_,hi_): return [S("s_mov_b32",s(r),"0x%08x"%lo_), S("s_mov_b32",s(r+1),"0x%08x"%hi_)]
    def cnd(d,a,b_,m): return V("v_cndmask_b32",v(d),v(a),v(b_),sr(m,2))
    P+=setm(sMa,0xFF80FF80,0xFF80FF80)+setm(sMb,0xFF80FF80,0x0000FF80)
    P+=[cnd(BIAS+j,BIAS+j,ninf,sMa if j==0 else sMb) for j in range(4)]
    P+=[S("s_cmp_eq_u32",s(sty),0), S("s_cselect_b64",sr(sMa,2),-1,0), S("s_mov_b32",s(sMb),s(sMa)), S("s_and_b32",s(sMb+1),s(sMa),"0xffff")]
    P+=[cnd(Ca+j,BIAS+j,Ca+j,sMa) for j in range(7)]
    P+=[cnd(Cb+j,BIAS+8+j,ninf,sMa if j==0 else sMb) for j in range(4)]
    P+=[cnd(Cc+j,BIAS+j,ninf,sMa if j==0 else sMb) for j in range(4)]
    P+=setm(sMc,0,0x007F0000)+setm(sMd,0x007F007F,0x007F007F)
    P+=[S("s_andn2_b64",sr(sMb,2),sr(sMc,2),sr(sMa,2)), S("s_andn2_b64",sr(sMa,2),sr(sMd,2),sr(sMa,2))]
    P+=[cnd(BIAS+24+j,BIAS+24+j,ninf,sMb if j<4 else sMa) for j in range(1,7)]
    P+=prodx(0)
    P+=[BAR(3)]
    P+=kload(0)+vload(0)+kload(1)
    P+=qproj(1)+qu(0,0)+vload(1)+prod(1,0)+qu(1,0)+prod(1,1)+qproj(2)+prodx(1)
    P+=[V("v_add_u32",v(aX),30720,v(aX))]
    P+=[BAR(4)]
    P+=kload(2)+qu(1,1)+vload(2)+kload(3)+qproj(3)
    P+=qu(2,0)+prod(2,0)+qu(2,1)+qproj(4)+qu(2,2)+vload(3)+prod(2,1)+qu(3,0)+norm(0)+qproj(5)+qu(3,1)+qproj(6)+prodx(2)
    P+=[BAR(5)]
    P+=kload(4)+qu(3,2)
    tA,tB,tC,tD=ACC,ACC+1,ACC+2,ACC+3
    P+=[V("v_add_u32",v(aOr),s(sdOr),v(aX)),
        V("v_bfe_u32",v(tA),v(aX),8,2), V("v_mad_i32_i24",v(aS2),v(tA),-8,v(aS1)),
        V("v_bfe_u32",v(tA),v(aX),4,2),
        V("v_and_b32",v(tB),"0x3c0",v(aX)), V("v_add_u32",v(tB),WOB,v(tB)),
        S("s_mul_i32",s(st0),s(snh),6), V("v_add_u32",v(tC),s(st0),v(tA)),
        V("v_and_b32",v(tD),3,v(tC)), V("v_lshl_add_u32",v(tD),v(tD),4,v(tB)), V("v_lshrrev_b32",v(tC),2,v(tC)), V("v_lshl_add_u32",v(tD),v(tC),10,v(tD)),
        S("s_mul_i32",s(st0),s(snh),1024+32), S("s_add_u32",s(st0),s(st0),1024),
        V("v_lshl_add_u32",v(tC),v(tA),3,v(tB)), V("v_add_u32",v(tC),s(st0),v(tC))]
    slot={(0,0):0,(0,1):1,(1,0):3,(1,1):4,(2,0):2,(2,1):5}
    for n in range(3):
        for ks in range(3):
            for e in range(2):
                P+=[DSR("ds_read_b64_tr_b16",Wq(n,ks)+2*e,2,tD if n<2 else tC,slot[(ks,e)]*3072+(8 if n==1 else 0),after=1)]
    P+=qu(3,3)+vload(4)+kload(5)
    P+=qu(4,1)+norm(1)+prod(3,0)+qu(4,2)
    P+=[V("v_mov_b32",v(aQx1),"0xff800000")]+[cnd(BIAS+24+j,BIAS+24+j,aQx1,sMc if j<4 else sMd) for j in range(1,7)]
    P+=qu(4,3)+prod(3,1)+qu(4,4)+vload(5)+qu(5,2)+norm(2)+prodx(3)+outp(0)+qu(5,3)
    P+=[BAR(6)]
    P+=kload(6)+qu(5,4)+outp(1)+qu(5,5)+vload(6)+kload(7)
    P+=qu(6,3)+norm(3)+prod(4,0)+qu(6,4)+prod(4,1)+qu(6,5)+qu(6,6)+vload(7)+qu(7,4)+norm(4)+prodx(4)
    P+=[BAR(7)]
    P+=kload(8)+qu(7,5)+outp(2)+qu(7,6)+vload(8)+kload(9)
    P+=qu(8,5)+norm(5)+qu(8,6)+vload(9)+qu(9,6)+norm(6)
    if not safe:
        P+=[V("v_mov_b32",v(WKV),FLAG), V("v_mov_b32",v(WKV+1),1),
            V("v_cmp_nle_f32","vcc",v(tmax),v(WKV+2)) if False else V("v_cmp_nge_f32","vcc",f32(OPT["thr"]),v(tmax)),
            MACRO([RAW("s_nop 4")],"s_cbranch_vccz",[DSW("ds_write_b32",WKV,WKV+1,1,0,before=8)])]
        P[-1].su=P[-1].su|{"vcc"}
    P+=[BAR(8)]
    if not safe: P+=[DSR("ds_read_b32",WKV+2,1,WKV,0,after=8)]
    P+=outp(3)
    return P

def build():
    fast=common_setup()+body(False)
    fs=schedule(fast,window=OPT["window"],mf_gap=OPT["mf_gap"],verbose=True)
    fs+=[V("v_readfirstlane_b32","s52",vr(WKV+2)), S("s_cmp_eq_u32","s52",1 if OPT["force_safe"]=="inv" else 0)]
    ft=emit(insert_nops(insert_waits(flatten(fs,"f"))))
    ss=schedule(body(True),window=OPT["window"],verbose=True)
    st=emit(insert_nops(insert_waits(flatten(ss,"s"))))
    hdr=open("cdna_kernels/%s.s.ref"%NAME).read().split("; Override")[0]
    return f"""{hdr}; @launch grid=(256,1,1) block=(512,1,1) lds={LDS_TOTAL}
.amdgcn_target "amdgcn-amd-amdhsa--gfx950"
.text
.globl {NAME}_kernel
.p2align 8
.type {NAME}_kernel,@function
{NAME}_kernel:
    s_load_dwordx2 s[{sX}:{sX+1}], s[0:1], 0
    s_load_dwordx4 s[4:7], s[0:1], 8
    s_load_dwordx2 s[{sR}:{sR+1}], s[0:1], 24
    s_load_dwordx2 s[{sO}:{sO+1}], s[0:1], 32
    s_cmp_ge_u32 s2, 256
    s_cbranch_scc1 L_end
{ft}
    s_cbranch_scc1 L_end
    s_waitcnt vmcnt(0) lgkmcnt(0)
    s_barrier
{st}
L_end:
    s_endpgm
.section .rodata,"a"
.p2align 6
.amdhsa_kernel {NAME}_kernel
  .amdhsa_next_free_vgpr 256
  .amdhsa_next_free_sgpr 96
  .amdhsa_accum_offset 256
  .amdhsa_group_segment_fixed_size 0
  .amdhsa_kernarg_size 56
  .amdhsa_user_sgpr_count 2
  .amdhsa_user_sgpr_kernarg_segment_ptr 1
  .amdhsa_system_sgpr_workgroup_id_x 1
.end_amdhsa_kernel
"""
txt=build()
open(sys.argv[1],"w").write(txt)
```

```python
import sys, struct, math
from asmlib import *
import asmlib

NAME="standalone__neighborhood_dinat__vision"
OPT=dict(store_flags="", x_flags="", pk=True, window=400, mf_gap=16, thr=2.0**64, dump=None, force_safe=False, prof=False)
for a in sys.argv[2:]:
    k,v=a.split("="); OPT[k]=eval(v)

def f32(x): return "0x%08x"%struct.unpack("<I",struct.pack("<f",x))[0]
LOG2E=math.log2(math.e)
QSCALE=24**-0.5*LOG2E

RB=76800; HB=7936; BS=4*HB+656; ONES=RB+4*HB; WB=RB; TB=RB+55296; WOB=RB+2*BS; FLAG=WOB+18432; LDS_TOTAL=163840
assert FLAG+16<=LDS_TOTAL and TB+4096<=RB+BS+4*HB
aX,aKw,aVw,aKr0,aKr1,aV00,aV01,aV10,aV11,tmax,qs,aQx0=range(12)
aOr=qs; aS2=aQx0
WKV=12; WQO=48; BIAS=84; QB=116; OB=140; KB=172; VB=188; SB=196; PB=212; XA=220; XB=232; ACC=244
assert ACC+12==256
aQx1=BIAS+7; aOw1=BIAS+15; aOw2=BIAS+23; aS1=BIAS+31
aKr=[aKr0,aKr1]; aV0=[aV00,aV01]; aV1=[aV10,aV11]; aQx=[aQx0,aQx1]
def Qr(s): return WQO+24 if s==0 else QB+4*(s-1)
Cb=WQO+28; Cc=WQO+32; Ca=OB+24
def Or(s): return OB+8*(s%4)
def Wkv(n,ks): return WKV+12*n+4*ks
def Wq(n,ks): return WQO+12*n+4*ks
sX=16; sW=20; sR=24; sO=28
sw,sh,ssg,sstr,srb,sr0,sc0,stop=36,37,38,39,40,41,42,43
sm20,s384,s3277,sflip,sjb,sty,stx=44,45,46,47,48,49,50
st0,st1,st2,st3=52,53,54,55
sSO=56
sMa,sMb,sMc,sMd=60,62,64,66
sA,sB=68,69
sdOr=70; snh=71

def common_setup():
    p=[]
    p+=[V("v_lshrrev_b32","v1",6,"v0"), V("v_readfirstlane_b32",sr(sw),"v1")]
    for b,n in ((sX,9633792),(sR,1352),(sO,9633792)):
        p+=[S("s_mov_b32",sr(b+2),n), S("s_mov_b32",sr(b+3),"0x00020000")]
    p+=[S("s_mov_b32",sr(sW+3),"0x00020000")]
    p+=[S("s_lshr_b32",sr(st0),"s2",3),
        S("s_bfe_u32",sr(stx),sr(st0),"0x20001"),
        S("s_and_b32",sr(st1),"s2",4),
        S("s_or_b32",sr(stx),sr(stx),sr(st1)),
        S("s_lshr_b32",sr(sty),sr(st0),3),
        S("s_and_b32",sr(st1),"s2",2),
        S("s_lshl_b32",sr(st1),sr(st1),1),
        S("s_or_b32",sr(sty),sr(sty),sr(st1)),
        S("s_and_b32",sr(st2),"s2",1),
        S("s_and_b32",sr(st3),sr(st0),1),
        S("s_mul_i32",sr(st3),sr(st3),192),
        S("s_cmp_eq_u32",sr(sty),7),
        S("s_cselect_b32",sr(sflip),1,0),
        S("s_cselect_b32",sr(sty),0,sr(sty)),
        S("s_cselect_b32",sr(st1),222,0),
        S("s_mov_b32",sr(sstr),86016),
        S("s_cselect_b32",sr(sstr),-86016,sr(sstr)),
        S("s_add_u32",sr(st1),sr(st1),sr(st2)),
        S("s_mul_i32",sr(srb),sr(st1),43008),
        S("s_add_u32",sr(srb),sr(srb),sr(st3)),
        S("s_mul_i32",sr(sr0),sr(sty),14),
        S("s_sub_u32",sr(sr0),sr(sr0),3),
        S("s_mul_i32",sr(sc0),sr(stx),14),
        S("s_sub_u32",sr(sc0),sr(sc0),3),
        S("s_mov_b32",sr(sm20),-20), S("s_movk_i32",sr(s384),384), S("s_movk_i32",sr(s3277),3277),
        S("s_and_b32",sr(sh),sr(sw),3), S("s_lshr_b32",sr(ssg),sr(sw),2),
    ]
    return p

def body(safe):
    P=[]
    T=list(range(OB,OB+24))+list(range(KB,KB+24))+list(range(SB,SB+24))
    ti=iter(T)
    lane,li,lg,gb,pv,ta,tb,tc=[next(ti) for _ in range(8)]
    v=lambda r:f"v{r}"
    s=lambda r:f"s{r}"
    P+=[V("v_mbcnt_lo_u32_b32",v(lane),-1,0), V("v_mbcnt_hi_u32_b32",v(lane),-1,v(lane)),
        V("v_and_b32",v(li),15,v(lane)), V("v_lshrrev_b32",v(lg),4,v(lane)),
        V("v_lshl_add_u32",v(gb),v(lg),4,s(srb)),
        S("s_lshl_b32",s(st0),s(sw),4), V("v_add_u32",v(pv),s(st0),v(li))]
    def xaddr(dst,padd,first,pbase):
        q=[]
        if padd: q+=[V("v_add_u32",v(ta),padd,v(pbase))]; pp=ta
        else: pp=pbase
        q+=[V("v_mul_u32_u24",v(tb),s(s3277),v(pp)), V("v_lshrrev_b32",v(tb),16,v(tb)),
            V("v_mad_i32_i24",v(tc),v(tb),s(sm20),v(pp)), V("v_add_u32",v(tc),s(sc0),v(tc)),
            V("v_max_i32",v(tc),0,v(tc)), V("v_min_i32",v(tc),111,v(tc)),
            V("v_add_u32",v(tb),s(sr0),v(tb))]
        if first: q+=[V("v_and_b32",v(dst),7,v(tb)), V("v_max_i32",v(tb),v(tb),v(dst))]
        q+=[V("v_mad_u32_u24",v(tc),v(tc),s(s384),v(gb)), V("v_mad_i32_i24",v(dst),v(tb),s(sstr),v(tc))]
        return q
    xa=[next(ti) for _ in range(4)]
    P+=xaddr(xa[0],0,True,pv)
    w1,w2,l4,cc=[next(ti) for _ in range(4)]
    P+=[V("v_lshrrev_b32",v(l4),2,v(lane)), V("v_and_b32",v(cc),3,v(lane)),
        V("v_and_b32",v(ta),2,v(lg)), V("v_xor_b32",v(ta),v(ta),v(cc)), V("v_lshlrev_b32",v(ta),4,v(ta)),
        V("v_mul_u32_u24",v(w1),576,v(l4)), V("v_add_u32",v(w1),v(w1),v(ta)), V("v_xor_b32",v(w2),16,v(w1))]
    wo_body=[V("v_lshlrev_b32",v(ta),4,v(cc)), V("v_mul_u32_u24",v(w1),192,v(l4)), V("v_add_u32",v(w1),v(w1),v(ta)),
        V("v_bfe_u32",v(tb),v(lane),3,1), V("v_mul_u32_u24",v(tb),24,v(tb)),
        V("v_bfe_u32",v(tc),v(lane),2,1), V("v_add3_u32",v(tb),v(tb),v(tc),20),
        V("v_bfe_u32",v(tc),v(lane),4,1), V("v_mad_i32_i24",v(tb),v(tc),-4,v(tb)),
        V("v_bfe_u32",v(tc),v(lane),5,1), V("v_lshl_add_u32",v(tb),v(tc),1,v(tb)),
        V("v_mul_u32_u24",v(w2),192,v(tb)), V("v_add_u32",v(w2),v(w2),v(ta))]
    P+=[MACRO([S("s_cmp_lt_u32",s(sw),6)],"s_cbranch_scc1",wo_body)]
    P+=[S("s_sub_u32",s(st1),s(sw),6), S("s_cmp_lt_u32",s(sw),6),
        S("s_cselect_b32",s(st1),s(sw),s(st1)),
        S("s_mov_b32",s(st2),WOB), S("s_cselect_b32",s(st2),WB,s(st2)),
        S("s_movk_i32",s(sA),4608), S("s_cselect_b32",s(sA),192,s(sA)),
        S("s_cselect_b32",s(sB),s(s384),0),
        S("s_movk_i32",s(sW+2),18432), S("s_cselect_b32",s(sW+2),55296,s(sW+2)),
        S("s_mul_i32",s(st1),s(st1),9216),
        S("s_add_u32",s(st2),s(st2),s(st1)),
        S("s_add_u32",s(sA),s(sA),s(st1)), S("s_add_u32",s(sB),s(sB),s(st1)),
        S("s_mul_i32",s(st3),s(sw),3072)]
    if not safe:
        P+=[RAW("s_waitcnt lgkmcnt(0)",pin=True)]
    P+=[S("s_cmp_lt_u32",s(sw),6), S("s_cselect_b64",sr(sW,2),"s[4:5]","s[6:7]")]
    def xdma(m,bk):
        q=[]
        for ks in range(3):
            q+=[S("s_add_u32","m0",s(st3),24576*m+960*ks), DMA(xa[m],sX,0,64*ks,flags=OPT["x_flags"],before=bk)]
        return q
    P+=xdma(0,1)
    for t in range(9):
        P+=[S("s_add_u32","m0",s(st2),1024*t-64*(t%3)), DMA(w1 if t<6 else w2,sW,s([st1,sA,sB][t//3]),64*(t%3),before=1)]
    rb0,rb1,re=[next(ti) for _ in range(3)]
    P+=[S("s_lshl_b32",s(st0),s(ssg),2), V("v_add_u32",v(re),s(st0),v(lg)),
        S("s_mul_i32",s(st0),s(sh),338),
        S("s_cmp_eq_u32",s(sflip),1), S("s_cselect_b32",s(st1),-26,26), S("s_cselect_b32",s(st2),312,0),
        S("s_add_u32",s(st0),s(st0),s(st2)),
        V("v_lshl_add_u32",v(ta),v(li),1,s(st0)), V("v_mad_i32_i24",v(ta),v(re),s(st1),v(ta)),
        S("s_lshl_b32",s(st1),s(st1),3), V("v_add_u32",v(tb),s(st1),v(ta)),
        VLD("buffer_load_ushort",rb0,1,ta,sR), VLD("buffer_load_ushort",rb1,1,tb,sR)]
    P+=xaddr(xa[1],128,False,pv)+xdma(1,3)
    P+=xaddr(xa[2],256,False,pv)+xdma(2,4)
    P+=xaddr(xa[3],384,False,li)
    P+=[S("s_mul_i32",s(st0),s(sw),43), S("s_lshr_b32",s(st0),s(st0),7), S("s_mul_i32",s(st0),s(st0),3),
        S("s_sub_u32",s(st0),s(sw),s(st0)), S("s_lshl_b32",s(st1),s(st0),6), S("s_lshl_b32",s(st0),s(st0),10),
        S("s_add_u32","m0",s(st0),73728), DMA(xa[3],sX,s(st1),0,flags=OPT["x_flags"],before=4)]
    l16=next(ti)
    P+=[V("v_lshlrev_b32",v(l16),4,v(lane)),
        S("s_mul_i32",s(st0),s(ssg),3072), V("v_add_u32",v(aX),s(st0),v(l16)),
        S("s_lshr_b32",s(st1),s(sh),1), S("s_lshl_b32",s(st1),s(st1),10), S("s_and_b32",s(st2),s(sh),1), S("s_lshl_b32",s(st2),s(st2),3),
        S("s_add_u32",s(st1),s(st1),s(st2)), V("v_add_u32",v(aOw1),s(st1),v(aX)),
        S("s_lshl_b32",s(st1),s(sh),2), S("s_add_u32",s(st1),s(st1),2048), V("v_add_u32",v(aOw2),s(st1),v(aX)),
        S("s_lshr_b32",s(st1),s(sw),1), S("s_mul_i32",s(st1),s(st1),3072), S("s_sub_u32",s(sdOr),s(st1),s(st0)), S("s_sub_u32",s(sdOr),s(sdOr),30720),
        S("s_and_b32",s(snh),s(sw),1),
        S("s_mul_i32",s(st3),s(sh),HB), S("s_add_u32",s(st3),s(st3),RB)]
    g1280,c704=next(ti),next(ti)
    P+=[V("v_mul_u32_u24",v(g1280),1280,v(lg)),
        S("s_lshl_b32",s(st0),s(ssg),8), S("s_add_u32",s(st0),s(st0),s(st3)),
        V("v_lshl_add_u32",v(ta),v(li),4,s(st0)), V("v_add_u32",v(aKw),v(ta),v(g1280)),
        S("s_lshl_b32",s(st0),s(ssg),7), S("s_add_u32",s(st0),s(st0),s(st3)), S("s_add_u32",s(st0),s(st0),5120),
        V("v_lshl_add_u32",v(ta),v(li),3,s(st0)), V("v_mul_u32_u24",v(tb),704,v(lg)), V("v_add_u32",v(aVw),v(ta),v(tb)),
        V("v_mul_u32_u24",v(c704),704,v(cc))]
    OFF1=[20,21,32,1,22,23,2,3,24,25,28,29,26,27,30,31]
    k=[sum(OFF1[4*a+b]<<(8*b) for b in range(4)) for a in range(4)]
    kv=[next(ti) for _ in range(4)]
    P+=[V("v_mov_b32",v(kv[a]),"0x%08x"%k[a]) for a in range(4)]
    def off_of(dst0,dst1,x):
        return [V("v_add_u32",v(ta),3,v(x)), V("v_and_b32",v(ta),16,v(ta)), V("v_add_u32",v(dst0),v(ta),v(x)),
                V("v_and_b32",v(ta),7,v(x)), V("v_or_b32",v(ta),"0x0c0c0c00",v(ta)),
                V("v_perm_b32",v(tb),v(kv[1]),v(kv[0]),v(ta)), V("v_perm_b32",v(tc),v(kv[3]),v(kv[2]),v(ta)),
                V("v_cmp_gt_u32","vcc",8,v(x)), V("v_cndmask_b32",v(dst1),v(tc),v(tb),"vcc")]
    o0,o1=next(ti),next(ti)
    P+=off_of(o0,o1,li)
    P+=[S("s_mul_i32",s(st0),s(ssg),112), S("s_add_u32",s(st0),s(st0),s(st3)), V("v_add_u32",v(g1280),s(st0),v(g1280)),
        V("v_lshl_add_u32",v(aKr0),v(o0),4,v(g1280)), V("v_lshl_add_u32",v(aKr1),v(o1),4,v(g1280))]
    P+=off_of(o0,o1,l4)
    P+=[S("s_mul_i32",s(st1),s(ssg),56), S("s_add_u32",s(st1),s(st1),s(st3)), S("s_add_u32",s(st1),s(st1),5120),
        V("v_add_u32",v(c704),s(st1),v(c704)),
        V("v_lshl_add_u32",v(aV00),v(o0),3,v(c704)), V("v_lshl_add_u32",v(aV01),v(o1),3,v(c704)),
        S("s_add_u32",s(st0),s(st0),3840), V("v_lshl_add_u32",v(ta),v(cc),3,s(st0)),
        V("v_lshl_add_u32",v(aV10),v(o0),4,v(ta)), V("v_lshl_add_u32",v(aV11),v(o1),4,v(ta)),
        V("v_mov_b32",v(tb),ONES), V("v_cmp_gt_u32","vcc",2,v(cc)),
        V("v_cndmask_b32",v(aV10),v(tb),v(aV10),"vcc"), V("v_cndmask_b32",v(aV11),v(tb),v(aV11),"vcc")]
    qr,qc=next(ti),next(ti)
    P+=[V("v_min_u32",v(ta),13,v(li)), V("v_add_u32",v(qr),9,v(ta)), V("v_lshrrev_b32",v(qr),4,v(qr)),
        V("v_mad_i32_i24",v(qc),v(qr),-7,v(ta))]
    P+=[S("s_mul_i32",s(st0),s(ssg),7), S("s_add_u32",s(st1),s(st0),63),
        V("v_mad_u32_u24",v(ta),v(qr),20,v(qc)), V("v_add_u32",v(ta),s(st1),v(ta))]
    for par in range(2):
        if par: P+=[V("v_add_u32",v(ta),40,v(ta))]
        P+=[V("v_lshrrev_b32",v(tb),4,v(ta)), V("v_mul_u32_u24",v(tb),3072,v(tb)), V("v_and_b32",v(tc),15,v(ta)),
            V("v_lshl_add_u32",v(tb),v(tc),4,v(tb)), V("v_lshl_add_u32",v(aQx[par]),v(lg),8,v(tb))]
    P+=[V("v_mov_b32",v(ta),f32(QSCALE)), V("v_cmp_gt_u32","vcc",3,v(lg)), V("v_cndmask_b32",v(qs),0,v(ta),"vcc"),
        V("v_mov_b32",v(tmax),0)]
    P+=[S("s_add_u32",s(sjb),s(sc0),s(st0)), S("s_add_u32",s(sjb),s(sjb),3)]
    P+=[S("s_bfe_u32",s(st0),s(sw),"0x10001"), S("s_mul_i32",s(st0),s(st0),7), S("s_add_u32",s(st0),s(st0),s(sc0)), S("s_add_u32",s(st0),s(st0),3),
        V("v_add_u32",v(ta),s(st0),v(qc)),
        S("s_mul_i32",s(st1),s(snh),96), V("v_add_u32",v(tb),s(st1),v(gb)),
        V("v_mad_u32_u24",v(ta),v(ta),s(s384),v(tb)),
        S("s_mul_i32",s(st1),s(sflip),12), S("s_add_u32",s(st1),s(st1),s(sr0)), S("s_add_u32",s(st1),s(st1),3),
        V("v_add_u32",v(tb),s(st1),v(qr)), V("v_mad_i32_i24",v(ta),v(tb),s(sstr),v(ta)),
        V("v_mov_b32",v(tb),"0x80000000"), V("v_cmp_gt_u32","vcc",14,v(li)), V("v_cndmask_b32",v(aS1),v(tb),v(ta),"vcc")]
    for k4 in range(4):
        P+=[S("s_add_u32",s(st0),s(ssg),2*k4-1) if k4 else S("s_mov_b32",s(st0),0),
            S("s_sub_u32",s(st1),6,s(st0)), S("s_cmp_eq_u32",s(sflip),1), S("s_cselect_b32",s(st0),s(st1),s(st0)),
            S("s_mul_i32",s(sSO+k4),s(st0),172032)]
    wa,wb_,wc,wqa,wqb,rp,g02=[next(ti) for _ in range(7)]
    P+=[V("v_lshrrev_b32",v(ta),5,v(lane)), V("v_mul_u32_u24",v(rp),9216,v(ta)),
        V("v_bfe_u32",v(ta),v(lane),4,1), V("v_lshlrev_b32",v(g02),1,v(ta)),
        V("v_lshl_add_u32",v(rp),v(ta),9,v(rp)), V("v_bfe_u32",v(ta),v(lane),2,2), V("v_lshl_add_u32",v(rp),v(ta),6,v(rp)),
        V("v_add_u32",v(rp),WB,v(rp)), S("s_mul_i32",s(st0),s(sh),3)]
    def waddr(dst,u,tw,half):
        q=[V("v_lshrrev_b32",v(tb),2,v(u)), V("v_lshl_add_u32",v(dst),v(tb),10,v(rp)),
           V("v_and_b32",v(tb),3,v(u)), V("v_xor_b32",v(tb),v(tb),v(g02))]
        if tw==1: q+=[V("v_xor_b32",v(tb),1,v(tb))]
        elif tw is not None: q+=[V("v_xor_b32",v(tb),v(tb),v(tw))]
        q+=[V("v_lshl_add_u32",v(dst),v(tb),4,v(dst)), V("v_lshl_add_u32",v(dst),v(half),3,v(dst))]
        return q
    c1,c3=next(ti),next(ti)
    P+=[V("v_lshrrev_b32",v(c1),1,v(cc)), V("v_and_b32",v(c3),v(c1),v(cc)),
        V("v_add_u32",v(ta),s(st0),v(cc))]
    P+=waddr(wqa,ta,None,c1)+[V("v_xor_b32",v(wqb),8,v(wqa))]
    P+=[V("v_mad_u32_u24",v(ta),v(c3),11,v(ta)), V("v_add_u32",v(ta),12,v(ta))]
    P+=waddr(wa,ta,c3,c1)+[V("v_xor_b32",v(wb_),8,v(wa))]
    P+=[V("v_add_u32",v(ta),s(st0),v(c1)), V("v_add_u32",v(ta),24,v(ta)), V("v_and_b32",v(tc),1,v(cc))]
    P+=waddr(wc,ta,1,tc)
    ba=[next(ti) for _ in range(7)]
    lo,base0,qc3,g3,ninf=[next(ti) for _ in range(5)]
    P+=[S("s_sub_u32",s(st0),s(sjb),3), V("v_add_u32",v(ta),s(st0),v(qc)), V("v_max_i32",v(ta),0,v(ta)), V("v_min_i32",v(ta),105,v(ta)),
        V("v_subrev_u32",v(lo),s(st0),v(ta)),
        S("s_lshl_b32",s(st0),s(sh),10), S("s_add_u32",s(st0),s(st0),TB+192),
        V("v_lshlrev_b32",v(ta),6,v(qr)), V("v_sub_u32",v(base0),s(st0),v(ta)),
        V("v_sub_u32",v(qc3),3,v(qc)),
        V("v_lshrrev_b32",v(g3),1,v(lg)), V("v_and_b32",v(g3),v(g3),v(lg)),
        V("v_mov_b32",v(ninf),"0xff800000")]
    for j in range(7):
        t,r=divmod(j,4)
        if t==0:
            if r==0: P+=[V("v_lshlrev_b32",v(ta),2,v(lg))]
            else: P+=[V("v_sub_u32",v(ta),v(lg),v(g3)), V("v_lshl_add_u32",v(ta),v(ta),2,r)]
        elif r<2: P+=[V("v_lshl_add_u32",v(ta),v(lg),1,r)]
        else: P+=[V("v_lshlrev_b32",v(tb),3,v(lg)), V("v_lshrrev_b32",v(ta),v(tb),v(kv[0])) , V("v_and_b32",v(ta),255,v(ta))]
        if j==5: P+=[V("v_mov_b32",v(kv[0]),"0x6408640c")]
        P+=[V("v_sub_u32",v(tb),v(ta),v(lo)), V("v_add_u32",v(ta),v(ta),v(qc3)), V("v_cmp_gt_u32","vcc",7,v(tb)),
            V("v_cndmask_b32",v(ta),13,v(ta),"vcc"), V("v_lshl_add_u32",v(ba[j]),v(ta),2,v(base0))]
        if t==0 and r>0: P+=[V("v_lshl_add_u32",v(ba[j]),v(g3),6,v(ba[j]))]
    P+=[S("s_lshl_b32",s(st0),s(sh),10), S("s_lshl_b32",s(st1),s(ssg),8), S("s_add_u32",s(st0),s(st0),s(st1)), S("s_add_u32",s(st0),s(st0),TB),
        V("v_lshl_add_u32",v(re),v(lane),2,s(st0)), V("v_cmp_gt_u32","vcc",13,v(li))]
    for m,rb in enumerate((rb0,rb1)):
        P+=[V("v_lshlrev_b32",v(rb),16,v(rb)), V("v_mul_f32",v(rb),f32(LOG2E),v(rb)), V("v_cndmask_b32",v(rb),v(ninf),v(rb),"vcc"),
            DSW("ds_write_b32",re,rb,1,512*m,before=1)]
    P+=[V("v_mov_b32",v(tb),FLAG), DSW("ds_write_b32",tb,tmax,1,0,before=1)]
    P+=[BAR(1)]
    for n,ad in enumerate((wa,wb_,wc)):
        for ks in range(3):
            for e in range(2):
                P+=[DSR("ds_read_b64_tr_b16",Wkv(n,ks)+2*e,2,ad,ks*18432+e*256,after=1,before=2)]
    xset=[XA,XA] if safe else [XA,XB]
    xi=[0]
    def nextx():
        xi[0]^=1; return xset[xi[0]^1]
    def landed(tile): return 1 if tile<8 else (3 if tile<16 else 4)
    def xreads(X,k,jj2,extra):
        se=1-(k&1)
        t0=5*k+(4-se if extra else 2*jj2)
        bump=30720 if k>=2 else 0
        return [DSR("ds_read_b128",X+4*ks,4,aX,3072*t0+1024*ks-bump,after=landed(min(t0+1,24)),before=k+3) for ks in range(3)]
    def prodcore(X,k,jj2,extra,acc=ACC):
        se=1-(k&1); buf=(k&1)*BS
        q=[]
        for n in range(3):
            for ks in range(3):
                q+=[MF(acc+4*n,Wkv(n,ks),X+4*ks,None if ks==0 else acc+4*n)]
        for j in range(6):
            dst=acc+j if j<4 else acc+4+j
            q+=[V("v_cvt_pk_bf16_f32",v(dst),v(acc+2*j),v(acc+2*j+1))]
        px=(4-se)*16 if extra else 32*jj2
        q+=[DSW("ds_write_b128",aKw,acc,4,buf+px*16,after=k+2,before=k+3), DSW("ds_write_b64",aVw,acc+8,2,buf+px*8,after=k+2,before=k+3)]
        return q
    def prod(k,jj2,acc=ACC):
        X=nextx(); return xreads(X,k,jj2,False)+prodcore(X,k,jj2,False,acc)
    def prodx(k):
        X=nextx(); se=1-(k&1)
        return xreads(X,k,0,True)+[MACRO([S("s_cmp_eq_u32",s(ssg),se)],"s_cbranch_scc0",schedule(prodcore(X,k,0,True)))]
    def mulq(r,src):
        if OPT["pk"]:
            i=V("v_pk_mul_f32",vr(r,2),vr(r,2),vr(src,2),mod="op_sel_hi:[1,0]"); i.vu=i.vu-{src+1}|{r,r+1}
            return [i]
        return [V("v_mul_f32",v(r),v(src),v(r)), V("v_mul_f32",v(r+1),v(src),v(r+1))]
    def qproj(sx,acc=ACC):
        X=nextx(); q=[]
        tl=(99+40*sx)//16
        q+=[DSR("ds_read_b128",X+4*ks,4,aQx[sx&1],(sx>>1)*15360+1024*ks,after=landed(tl),before=3 if sx==0 else 5) for ks in range(3)]
        for n in range(2):
            for ks in range(3): q+=[MF(acc+4*n,Wq(n,ks),X+4*ks,None if ks==0 else acc+4*n)]
        for j in range(4):
            q+=mulq(acc+2*j,qs)+[V("v_cvt_pk_bf16_f32",v(Qr(sx)+j),v(acc+2*j),v(acc+2*j+1))]
        return q
    def kload(p):
        k=p>>1; o=(k&1)*BS+640*(p&1)
        return [DSR("ds_read_b128",KB+8*(p&1)+4*t,4,aKr[t],o,after=k+3,before=k+4) for t in range(2)]
    def vload(p):
        k=p>>1; b=(k&1)*BS
        return ([DSR("ds_read_b64_tr_b16",VB+2*t,2,aV0[t],b+320*(p&1),after=k+3,before=k+4) for t in range(2)]+
                [DSR("ds_read_b64_tr_b16",VB+4+2*t,2,aV1[t],b+640*(p&1),after=k+3,before=k+4) for t in range(2)])
    qi=[0]
    MX=XB; T1,T2=XB+4,XB+5
    def qu(p,sx):
        b=p-sx; qi[0]^=1; Sr=SB+8*qi[0]; Pr=PB+4*qi[0]; O=Or(sx)
        c0,c1_=BIAS+8*b,BIAS+8*b+4
        if (sx,b)==(0,0): c0,c1_=Ca,Ca+4
        if (sx,b)==(0,1): c0=Cb
        if (sx,b)==(1,0): c0=Cc
        K=KB+8*(p&1)
        q=[MF(Sr,K,Qr(sx),c0), MF(Sr+4,K+4,Qr(sx),c1_)]
        if safe:
            m=MX+(sx%4)
            q+=[V("v_max3_f32",v(T1),v(Sr),v(Sr+1),v(Sr+2)), V("v_max3_f32",v(T1),v(T1),v(Sr+3),v(Sr+4)), V("v_max3_f32",v(T1),v(T1),v(Sr+5),v(Sr+6)),
                V("v_mov_b32",v(T2),v(T1)), V("v_permlane32_swap_b32",v(T1),v(T2)), V("v_max_f32",v(T1),v(T1),v(T2)),
                V("v_mov_b32",v(T2),v(T1)), V("v_permlane16_swap_b32",v(T1),v(T2))]
            if b==0: q+=[V("v_max_f32",v(m),v(T1),v(T2))]
            else:
                q+=[V("v_max3_f32",v(T1),v(T1),v(T2),v(m)), V("v_sub_f32",v(T2),v(m),v(T1)), V("v_exp_f32",v(T2),v(T2)), V("v_mov_b32",v(m),v(T1))]
                q+=[V("v_mul_f32",v(O+j),v(T2),v(O+j)) for j in range(8)]
            q+=[V("v_sub_f32",v(Sr+j),v(Sr+j),v(m)) for j in range(7)]
        for j in range(7):
            q+=[V("v_exp_f32",v(Sr+j),v(Sr+j))]
            if j&1: q+=[V("v_cvt_pk_bf16_f32",v(Pr+j//2),v(Sr+j-1),v(Sr+j))]
        q+=[V("v_cvt_pk_bf16_f32",v(Pr+3),v(Sr+6),0)]
        q+=[MF(O,VB,Pr,None if b==0 else O), MF(O+4,VB+4,Pr,None if b==0 else O+4)]
        return q
    def norm(sx):
        O=Or(sx); bk={0:5,1:6,2:6,3:7,4:7,5:8,6:8}[sx]
        q=[V("v_permlane32_swap_b32",v(O+4),v(O+6)), V("v_permlane32_swap_b32",v(O+5),v(O+7)), V("v_rcp_f32",v(O+6),v(O+6))]
        if not safe: q+=[V("v_max3_f32",v(tmax),v(tmax),v(O+6),v(O+7))]
        for j in range(3):
            q+=mulq(O+2*j,O+6)+[V("v_cvt_pk_bf16_f32",v(O+j),v(O+2*j),v(O+2*j+1))]
        q+=[DSW("ds_write_b64",aOw1,O,2,(2*sx+2)*3072,after=bk-1,before=bk), DSW("ds_write_b32",aOw2,O+2,1,(2*sx+2)*3072,after=bk-1,before=bk)]
        return q
    def oreads(X,k4): return [DSR("ds_read_b128",X+4*ks,4,aOr,4*k4*3072+1024*ks,after=k4+5) for ks in range(3)]
    def outcore(X,k4,acc=ACC):
        q=[]
        for n in range(3):
            for ks in range(3): q+=[MF(acc+4*n,Wq(n,ks),X+4*ks,None if ks==0 else acc+4*n)]
        for j in range(6):
            dst=acc+j if j<4 else acc+4+j
            q+=[V("v_cvt_pk_bf16_f32",v(dst),v(acc+2*j),v(acc+2*j+1))]
        q+=[VST("buffer_store_dwordx4",acc,4,aS1,sO,s(sSO+k4),0,flags=OPT["store_flags"]),
            VST("buffer_store_dwordx2",acc+8,2,aS2,sO,s(sSO+k4),64,flags=OPT["store_flags"])]
        return q
    def outp(k4):
        X=nextx()
        if k4==0:
            return oreads(X,0)+[MACRO([S("s_cmp_eq_u32",s(ssg),1)],"s_cbranch_scc0",schedule(outcore(X,0)))]
        return oreads(X,k4)+outcore(X,k4)
    p0=prod(0,0)
    P+=p0[:3]
    for n,ad in enumerate((wqa,wqb)):
        for ks in range(3):
            for e in range(2):
                P+=[DSR("ds_read_b64_tr_b16",Wq(n,ks)+2*e,2,ad,ks*18432+e*256,after=1,before=2)]
    P+=p0[3:-2]
    P+=[BAR(2)]
    P+=p0[-2:]
    P+=[V("v_mov_b32",v(kv[0]),"0x3f803f80"), V("v_mov_b32",v(kv[1]),"0x3f803f80"), V("v_mov_b32",v(tb),ONES)]
    assert kv[0]%2==0 and kv[1]==kv[0]+1
    for o in (0,640,BS,BS+640): P+=[DSW("ds_write_b64",tb,kv[0],2,o,after=2,before=3)]
    P+=prod(0,1)
    for b in range(5):
        for j in range(7):
            rho=64 if j>=4 else 0
            P+=[DSR("ds_read_b32",(BIAS+8*b if b<4 else Ca)+j,1,ba[j],128*b+rho,after=1,before=3)]
    P+=qproj(0)
    def setm(r,lo_,hi_): return [S("s_mov_b32",s(r),"0x%08x"%lo_), S("s_mov_b32",s(r+1),"0x%08x"%hi_)]
    def cnd(d,a,b_,m): return V("v_cndmask_b32",v(d),v(a),v(b_),sr(m,2))
    P+=setm(sMa,0xFF80FF80,0xFF80FF80)+setm(sMb,0xFF80FF80,0x0000FF80)
    P+=[cnd(BIAS+j,BIAS+j,ninf,sMa if j==0 else sMb) for j in range(4)]
    P+=[S("s_cmp_eq_u32",s(sty),0), S("s_cselect_b64",sr(sMa,2),-1,0), S("s_mov_b32",s(sMb),s(sMa)), S("s_and_b32",s(sMb+1),s(sMa),"0xffff")]
    P+=[cnd(Ca+j,BIAS+j,Ca+j,sMa) for j in range(7)]
    P+=[cnd(Cb+j,BIAS+8+j,ninf,sMa if j==0 else sMb) for j in range(4)]
    P+=[cnd(Cc+j,BIAS+j,ninf,sMa if j==0 else sMb) for j in range(4)]
    P+=setm(sMc,0,0x007F0000)+setm(sMd,0x007F007F,0x007F007F)
    P+=[S("s_andn2_b64",sr(sMb,2),sr(sMc,2),sr(sMa,2)), S("s_andn2_b64",sr(sMa,2),sr(sMd,2),sr(sMa,2))]
    P+=[cnd(BIAS+24+j,BIAS+24+j,ninf,sMb if j<4 else sMa) for j in range(1,7)]
    P+=prodx(0)
    P+=[BAR(3)]
    P+=kload(0)+vload(0)+kload(1)
    P+=qproj(1)+qu(0,0)+vload(1)+prod(1,0)+qu(1,0)+prod(1,1)+qproj(2)+prodx(1)
    P+=[V("v_add_u32",v(aX),30720,v(aX))]
    P+=[BAR(4)]
    P+=kload(2)+qu(1,1)+vload(2)+kload(3)+qproj(3)
    P+=qu(2,0)+prod(2,0)+qu(2,1)+qproj(4)+qu(2,2)+vload(3)+prod(2,1)+qu(3,0)+norm(0)+qproj(5)+qu(3,1)+qproj(6)+prodx(2)
    P+=[BAR(5)]
    P+=kload(4)+qu(3,2)
    tA,tB,tC,tD=ACC,ACC+1,ACC+2,ACC+3
    P+=[V("v_add_u32",v(aOr),s(sdOr),v(aX)),
        V("v_bfe_u32",v(tA),v(aX),8,2), V("v_mad_i32_i24",v(aS2),v(tA),-8,v(aS1)),
        V("v_bfe_u32",v(tA),v(aX),4,2),
        V("v_and_b32",v(tB),"0x3c0",v(aX)), V("v_add_u32",v(tB),WOB,v(tB)),
        S("s_mul_i32",s(st0),s(snh),6), V("v_add_u32",v(tC),s(st0),v(tA)),
        V("v_and_b32",v(tD),3,v(tC)), V("v_lshl_add_u32",v(tD),v(tD),4,v(tB)), V("v_lshrrev_b32",v(tC),2,v(tC)), V("v_lshl_add_u32",v(tD),v(tC),10,v(tD)),
        S("s_mul_i32",s(st0),s(snh),1024+32), S("s_add_u32",s(st0),s(st0),1024),
        V("v_lshl_add_u32",v(tC),v(tA),3,v(tB)), V("v_add_u32",v(tC),s(st0),v(tC))]
    slot={(0,0):0,(0,1):1,(1,0):3,(1,1):4,(2,0):2,(2,1):5}
    for n in range(3):
        for ks in range(3):
            for e in range(2):
                P+=[DSR("ds_read_b64_tr_b16",Wq(n,ks)+2*e,2,tD if n<2 else tC,slot[(ks,e)]*3072+(8 if n==1 else 0),after=1)]
    P+=qu(3,3)+vload(4)+kload(5)
    P+=qu(4,1)+norm(1)+prod(3,0)+qu(4,2)
    P+=[V("v_mov_b32",v(aQx1),"0xff800000")]+[cnd(BIAS+24+j,BIAS+24+j,aQx1,sMc if j<4 else sMd) for j in range(1,7)]
    P+=qu(4,3)+prod(3,1)+qu(4,4)+vload(5)+qu(5,2)+norm(2)+prodx(3)+outp(0)+qu(5,3)
    P+=[BAR(6)]
    P+=kload(6)+qu(5,4)+outp(1)+qu(5,5)+vload(6)+kload(7)
    P+=qu(6,3)+norm(3)+prod(4,0)+qu(6,4)+prod(4,1)+qu(6,5)+qu(6,6)+vload(7)+qu(7,4)+norm(4)+prodx(4)
    P+=[BAR(7)]
    P+=kload(8)+qu(7,5)+outp(2)+qu(7,6)+vload(8)+kload(9)
    P+=qu(8,5)+norm(5)+qu(8,6)+vload(9)+qu(9,6)+norm(6)
    if not safe:
        P+=[V("v_mov_b32",v(WKV),FLAG), V("v_mov_b32",v(WKV+1),1),
            V("v_cmp_nle_f32","vcc",v(tmax),v(WKV+2)) if False else V("v_cmp_nge_f32","vcc",f32(OPT["thr"]),v(tmax)),
            MACRO([RAW("s_nop 4")],"s_cbranch_vccz",[DSW("ds_write_b32",WKV,WKV+1,1,0,before=8)])]
        P[-1].su=P[-1].su|{"vcc"}
    P+=[BAR(8)]
    if not safe: P+=[DSR("ds_read_b32",WKV+2,1,WKV,0,after=8)]
    P+=outp(3)
    return P

def build():
    fast=common_setup()+body(False)
    fs=schedule(fast,window=OPT["window"],mf_gap=OPT["mf_gap"],verbose=True)
    fs+=[V("v_readfirstlane_b32","s52",vr(WKV+2)), S("s_cmp_eq_u32","s52",1 if OPT["force_safe"]=="inv" else 0)]
    pro=""; epi=""
    if OPT["prof"]:
        fs2=[]
        for x in fs:
            fs2.append(x)
            if x.kind=="bar": fs2.append(RAW(f"s_memtime s[{72+2*x.bar}:{73+2*x.bar}]"))
        fs=fs2
        pro="    s_memtime s[72:73]\n    s_memrealtime s[92:93]\n    s_load_dwordx4 s[8:11], s[0:1], 40\n"
        e=["s_waitcnt vmcnt(0)","s_memtime s[90:91]","s_memrealtime s[94:95]","s_waitcnt lgkmcnt(0)",
           "s_mov_b32 s12, s10","s_mov_b32 s13, s11","s_mov_b32 s14, 0x1000000","s_mov_b32 s15, 0x00020000",
           "s_mov_b32 s10, 256","s_mov_b32 s11, 0x00020000","v_mov_b32 v1, 0"]
        for k in range(12): e.append(f"v_writelane_b32 v1, s{72+2*k}, {k}")
        e+=["s_getreg_b32 s72, hwreg(HW_REG_XCC_ID)","s_getreg_b32 s73, hwreg(HW_REG_HW_ID)","s_nop 1","v_writelane_b32 v1, s72, 12","v_writelane_b32 v1, s73, 13"]
        e+=["s_lshl_b32 s52, s2, 3",f"s_add_u32 s52, s52, s{sw}","s_lshl_b32 s52, s52, 6",
            "v_mbcnt_lo_u32_b32 v2, -1, 0","v_mbcnt_hi_u32_b32 v2, -1, v2","v_lshlrev_b32 v3, 2, v2","v_mov_b32 v4, 0x80000000","v_cmp_gt_u32 vcc, 16, v2","s_nop 1","v_cndmask_b32 v3, v4, v3, vcc",
            "buffer_store_dword v1, v3, s[12:15], s52 offen",
            "s_not_b32 s92, s92","s_sub_u32 s53, s90, s74","v_mov_b32 v5, 0","v_writelane_b32 v5, s92, 0","v_writelane_b32 v5, s94, 1", "v_writelane_b32 v5, s53, 2",
            "v_cmp_gt_u32 vcc, 3, v2","v_lshlrev_b32 v3, 2, v2","s_nop 1","v_cndmask_b32 v3, v4, v3, vcc",
            "buffer_atomic_umax v5, v3, s[8:11], 0 offen",
            "s_waitcnt vmcnt(0)"]
        epi="\n".join("    "+x for x in e)+"\n"
    ft=emit(insert_nops(insert_waits(flatten(fs,"f"))))
    ss=schedule(body(True),window=OPT["window"],verbose=True)
    st=emit(insert_nops(insert_waits(flatten(ss,"s"))))
    hdr=open("cdna_kernels/%s.s.ref"%NAME).read().split("; Override")[0]
    return f"""{hdr}; @launch grid=(256,1,1) block=(512,1,1) lds={LDS_TOTAL}
.amdgcn_target "amdgcn-amd-amdhsa--gfx950"
.text
.globl {NAME}_kernel
.p2align 8
.type {NAME}_kernel,@function
{NAME}_kernel:
{pro}    s_load_dwordx2 s[{sX}:{sX+1}], s[0:1], 0
    s_load_dwordx4 s[4:7], s[0:1], 8
    s_load_dwordx2 s[{sR}:{sR+1}], s[0:1], 24
    s_load_dwordx2 s[{sO}:{sO+1}], s[0:1], 32
    s_cmp_ge_u32 s2, 256
    s_cbranch_scc1 L_end
{ft}
    s_cbranch_scc1 L_fin
    s_waitcnt vmcnt(0) lgkmcnt(0)
    s_barrier
{st}
L_fin:
{epi}L_end:
    s_endpgm
.section .rodata,"a"
.p2align 6
.amdhsa_kernel {NAME}_kernel
  .amdhsa_next_free_vgpr 256
  .amdhsa_next_free_sgpr 96
  .amdhsa_accum_offset 256
  .amdhsa_group_segment_fixed_size 0
  .amdhsa_kernarg_size 56
  .amdhsa_user_sgpr_count 2
  .amdhsa_user_sgpr_kernarg_segment_ptr 1
  .amdhsa_system_sgpr_workgroup_id_x 1
.end_amdhsa_kernel
"""
txt=build()
open(sys.argv[1],"w").write(txt)
```

```python
import sys, struct, math
from asmlib import *
import asmlib

NAME="standalone__neighborhood_dinat__vision"
OPT=dict(store_flags="", x_flags="", pk=True, window=400, mf_gap=16, thr=2.0**64, dump=None, force_safe=False, prof=False)
for a in sys.argv[2:]:
    k,v=a.split("="); OPT[k]=eval(v)

def f32(x): return "0x%08x"%struct.unpack("<I",struct.pack("<f",x))[0]
LOG2E=math.log2(math.e)
QSCALE=24**-0.5*LOG2E

RB=76800; HB=7936; BS=4*HB+656; ONES=RB+4*HB; WB=RB; TB=RB+55296; WOB=RB+2*BS; FLAG=WOB+18432; LDS_TOTAL=163840
assert FLAG+16<=LDS_TOTAL and TB+4096<=RB+BS+4*HB
aX,aKw,aVw,aKr0,aKr1,aV00,aV01,aV10,aV11,tmax,qs,aQx0=range(12)
aOr=qs; aS2=aQx0
WKV=12; WQO=48; BIAS=84; QB=116; OB=140; KB=172; VB=188; SB=196; PB=212; XA=220; XB=232; ACC=244
assert ACC+12==256
aQx1=BIAS+7; aOw1=BIAS+15; aOw2=BIAS+23; aS1=BIAS+31
aKr=[aKr0,aKr1]; aV0=[aV00,aV01]; aV1=[aV10,aV11]; aQx=[aQx0,aQx1]
def Qr(s): return WQO+24 if s==0 else QB+4*(s-1)
Cb=WQO+28; Cc=WQO+32; Ca=OB+24
def Or(s): return OB+8*(s%4)
def Wkv(n,ks): return WKV+12*n+4*ks
def Wq(n,ks): return WQO+12*n+4*ks
sX=16; sW=20; sR=24; sO=28
sw,sh,ssg,sstr,srb,sr0,sc0,stop=36,37,38,39,40,41,42,43
sm20,s384,s3277,sflip,sjb,sty,stx=44,45,46,47,48,49,50
st0,st1,st2,st3=52,53,54,55
sSO=56
sMa,sMb,sMc,sMd=60,62,64,66
sA,sB=68,69
sdOr=70; snh=71

def common_setup():
    p=[]
    p+=[V("v_lshrrev_b32","v1",6,"v0"), V("v_readfirstlane_b32",sr(sw),"v1")]
    for b,n in ((sX,9633792),(sR,1352),(sO,9633792)):
        p+=[S("s_mov_b32",sr(b+2),n), S("s_mov_b32",sr(b+3),"0x00020000")]
    p+=[S("s_mov_b32",sr(sW+3),"0x00020000")]
    p+=[S("s_lshr_b32",sr(st0),"s2",3),
        S("s_bfe_u32",sr(stx),sr(st0),"0x20001"),
        S("s_and_b32",sr(st1),"s2",4),
        S("s_or_b32",sr(stx),sr(stx),sr(st1)),
        S("s_lshr_b32",sr(sty),sr(st0),3),
        S("s_and_b32",sr(st1),"s2",2),
        S("s_lshl_b32",sr(st1),sr(st1),1),
        S("s_or_b32",sr(sty),sr(sty),sr(st1)),
        S("s_and_b32",sr(st2),"s2",1),
        S("s_and_b32",sr(st3),sr(st0),1),
        S("s_mul_i32",sr(st3),sr(st3),192),
        S("s_cmp_eq_u32",sr(sty),7),
        S("s_cselect_b32",sr(sflip),1,0),
        S("s_cselect_b32",sr(sty),0,sr(sty)),
        S("s_cselect_b32",sr(st1),222,0),
        S("s_mov_b32",sr(sstr),86016),
        S("s_cselect_b32",sr(sstr),-86016,sr(sstr)),
        S("s_add_u32",sr(st1),sr(st1),sr(st2)),
        S("s_mul_i32",sr(srb),sr(st1),43008),
        S("s_add_u32",sr(srb),sr(srb),sr(st3)),
        S("s_mul_i32",sr(sr0),sr(sty),14),
        S("s_sub_u32",sr(sr0),sr(sr0),3),
        S("s_mul_i32",sr(sc0),sr(stx),14),
        S("s_sub_u32",sr(sc0),sr(sc0),3),
        S("s_mov_b32",sr(sm20),-20), S("s_movk_i32",sr(s384),384), S("s_movk_i32",sr(s3277),3277),
        S("s_and_b32",sr(sh),sr(sw),3), S("s_lshr_b32",sr(ssg),sr(sw),2),
    ]
    return p

def body(safe):
    P=[]
    T=list(range(OB,OB+24))+list(range(KB,KB+24))+list(range(SB,SB+24))
    ti=iter(T)
    lane,li,lg,gb,pv,ta,tb,tc=[next(ti) for _ in range(8)]
    v=lambda r:f"v{r}"
    s=lambda r:f"s{r}"
    P+=[V("v_mbcnt_lo_u32_b32",v(lane),-1,0), V("v_mbcnt_hi_u32_b32",v(lane),-1,v(lane)),
        V("v_and_b32",v(li),15,v(lane)), V("v_lshrrev_b32",v(lg),4,v(lane)),
        V("v_lshl_add_u32",v(gb),v(lg),4,s(srb)),
        S("s_lshl_b32",s(st0),s(sw),4), V("v_add_u32",v(pv),s(st0),v(li))]
    def xaddr(dst,padd,first,pbase):
        q=[]
        if padd: q+=[V("v_add_u32",v(ta),padd,v(pbase))]; pp=ta
        else: pp=pbase
        q+=[V("v_mul_u32_u24",v(tb),s(s3277),v(pp)), V("v_lshrrev_b32",v(tb),16,v(tb)),
            V("v_mad_i32_i24",v(tc),v(tb),s(sm20),v(pp)), V("v_add_u32",v(tc),s(sc0),v(tc)),
            V("v_max_i32",v(tc),0,v(tc)), V("v_min_i32",v(tc),111,v(tc)),
            V("v_add_u32",v(tb),s(sr0),v(tb))]
        if first: q+=[V("v_and_b32",v(dst),7,v(tb)), V("v_max_i32",v(tb),v(tb),v(dst))]
        q+=[V("v_mad_u32_u24",v(tc),v(tc),s(s384),v(gb)), V("v_mad_i32_i24",v(dst),v(tb),s(sstr),v(tc))]
        return q
    xa=[next(ti) for _ in range(4)]
    P+=xaddr(xa[0],0,True,pv)
    w1,w2,l4,cc=[next(ti) for _ in range(4)]
    P+=[V("v_lshrrev_b32",v(l4),2,v(lane)), V("v_and_b32",v(cc),3,v(lane)),
        V("v_and_b32",v(ta),2,v(lg)), V("v_xor_b32",v(ta),v(ta),v(cc)), V("v_lshlrev_b32",v(ta),4,v(ta)),
        V("v_mul_u32_u24",v(w1),576,v(l4)), V("v_add_u32",v(w1),v(w1),v(ta)), V("v_xor_b32",v(w2),16,v(w1))]
    wo_body=[V("v_lshlrev_b32",v(ta),4,v(cc)), V("v_mul_u32_u24",v(w1),192,v(l4)), V("v_add_u32",v(w1),v(w1),v(ta)),
        V("v_bfe_u32",v(tb),v(lane),3,1), V("v_mul_u32_u24",v(tb),24,v(tb)),
        V("v_bfe_u32",v(tc),v(lane),2,1), V("v_add3_u32",v(tb),v(tb),v(tc),20),
        V("v_bfe_u32",v(tc),v(lane),4,1), V("v_mad_i32_i24",v(tb),v(tc),-4,v(tb)),
        V("v_bfe_u32",v(tc),v(lane),5,1), V("v_lshl_add_u32",v(tb),v(tc),1,v(tb)),
        V("v_mul_u32_u24",v(w2),192,v(tb)), V("v_add_u32",v(w2),v(w2),v(ta))]
    P+=[MACRO([S("s_cmp_lt_u32",s(sw),6)],"s_cbranch_scc1",wo_body)]
    P+=[S("s_sub_u32",s(st1),s(sw),6), S("s_cmp_lt_u32",s(sw),6),
        S("s_cselect_b32",s(st1),s(sw),s(st1)),
        S("s_mov_b32",s(st2),WOB), S("s_cselect_b32",s(st2),WB,s(st2)),
        S("s_movk_i32",s(sA),4608), S("s_cselect_b32",s(sA),192,s(sA)),
        S("s_cselect_b32",s(sB),s(s384),0),
        S("s_movk_i32",s(sW+2),18432), S("s_cselect_b32",s(sW+2),55296,s(sW+2)),
        S("s_mul_i32",s(st1),s(st1),9216),
        S("s_add_u32",s(st2),s(st2),s(st1)),
        S("s_add_u32",s(sA),s(sA),s(st1)), S("s_add_u32",s(sB),s(sB),s(st1)),
        S("s_mul_i32",s(st3),s(sw),3072)]
    if not safe:
        P+=[RAW("s_waitcnt lgkmcnt(0)",pin=True)]
    P+=[S("s_cmp_lt_u32",s(sw),6), S("s_cselect_b64",sr(sW,2),"s[4:5]","s[6:7]")]
    def xdma(m,bk):
        q=[]
        for ks in range(3):
            q+=[S("s_add_u32","m0",s(st3),24576*m+960*ks), DMA(xa[m],sX,0,64*ks,flags=OPT["x_flags"],before=bk)]
        return q
    P+=xdma(0,1)
    for t in range(9):
        P+=[S("s_add_u32","m0",s(st2),1024*t-64*(t%3)), DMA(w1 if t<6 else w2,sW,s([st1,sA,sB][t//3]),64*(t%3),before=1)]
    rb0,rb1,re=[next(ti) for _ in range(3)]
    P+=[S("s_lshl_b32",s(st0),s(ssg),2), V("v_add_u32",v(re),s(st0),v(lg)),
        S("s_mul_i32",s(st0),s(sh),338),
        S("s_cmp_eq_u32",s(sflip),1), S("s_cselect_b32",s(st1),-26,26), S("s_cselect_b32",s(st2),312,0),
        S("s_add_u32",s(st0),s(st0),s(st2)),
        V("v_lshl_add_u32",v(ta),v(li),1,s(st0)), V("v_mad_i32_i24",v(ta),v(re),s(st1),v(ta)),
        S("s_lshl_b32",s(st1),s(st1),3), V("v_add_u32",v(tb),s(st1),v(ta)),
        VLD("buffer_load_ushort",rb0,1,ta,sR), VLD("buffer_load_ushort",rb1,1,tb,sR)]
    P+=xaddr(xa[1],128,False,pv)+xdma(1,3)
    P+=xaddr(xa[2],256,False,pv)+xdma(2,4)
    P+=xaddr(xa[3],384,False,li)
    P+=[S("s_mul_i32",s(st0),s(sw),43), S("s_lshr_b32",s(st0),s(st0),7), S("s_mul_i32",s(st0),s(st0),3),
        S("s_sub_u32",s(st0),s(sw),s(st0)), S("s_lshl_b32",s(st1),s(st0),6), S("s_lshl_b32",s(st0),s(st0),10),
        S("s_add_u32","m0",s(st0),73728), DMA(xa[3],sX,s(st1),0,flags=OPT["x_flags"],before=4)]
    l16=next(ti)
    P+=[V("v_lshlrev_b32",v(l16),4,v(lane)),
        S("s_mul_i32",s(st0),s(ssg),3072), V("v_add_u32",v(aX),s(st0),v(l16)),
        S("s_lshr_b32",s(st1),s(sh),1), S("s_lshl_b32",s(st1),s(st1),10), S("s_and_b32",s(st2),s(sh),1), S("s_lshl_b32",s(st2),s(st2),3),
        S("s_add_u32",s(st1),s(st1),s(st2)), V("v_add_u32",v(aOw1),s(st1),v(aX)),
        S("s_lshl_b32",s(st1),s(sh),2), S("s_add_u32",s(st1),s(st1),2048), V("v_add_u32",v(aOw2),s(st1),v(aX)),
        S("s_lshr_b32",s(st1),s(sw),1), S("s_mul_i32",s(st1),s(st1),3072), S("s_sub_u32",s(sdOr),s(st1),s(st0)), S("s_sub_u32",s(sdOr),s(sdOr),30720),
        S("s_and_b32",s(snh),s(sw),1),
        S("s_mul_i32",s(st3),s(sh),HB), S("s_add_u32",s(st3),s(st3),RB)]
    g1280,c704=next(ti),next(ti)
    P+=[V("v_mul_u32_u24",v(g1280),1280,v(lg)),
        S("s_lshl_b32",s(st0),s(ssg),8), S("s_add_u32",s(st0),s(st0),s(st3)),
        V("v_lshl_add_u32",v(ta),v(li),4,s(st0)), V("v_add_u32",v(aKw),v(ta),v(g1280)),
        S("s_lshl_b32",s(st0),s(ssg),7), S("s_add_u32",s(st0),s(st0),s(st3)), S("s_add_u32",s(st0),s(st0),5120),
        V("v_lshl_add_u32",v(ta),v(li),3,s(st0)), V("v_mul_u32_u24",v(tb),704,v(lg)), V("v_add_u32",v(aVw),v(ta),v(tb)),
        V("v_mul_u32_u24",v(c704),704,v(cc))]
    OFF1=[20,21,32,1,22,23,2,3,24,25,28,29,26,27,30,31]
    k=[sum(OFF1[4*a+b]<<(8*b) for b in range(4)) for a in range(4)]
    kv=[next(ti) for _ in range(4)]
    P+=[V("v_mov_b32",v(kv[a]),"0x%08x"%k[a]) for a in range(4)]
    def off_of(dst0,dst1,x):
        return [V("v_add_u32",v(ta),3,v(x)), V("v_and_b32",v(ta),16,v(ta)), V("v_add_u32",v(dst0),v(ta),v(x)),
                V("v_and_b32",v(ta),7,v(x)), V("v_or_b32",v(ta),"0x0c0c0c00",v(ta)),
                V("v_perm_b32",v(tb),v(kv[1]),v(kv[0]),v(ta)), V("v_perm_b32",v(tc),v(kv[3]),v(kv[2]),v(ta)),
                V("v_cmp_gt_u32","vcc",8,v(x)), V("v_cndmask_b32",v(dst1),v(tc),v(tb),"vcc")]
    o0,o1=next(ti),next(ti)
    P+=off_of(o0,o1,li)
    P+=[S("s_mul_i32",s(st0),s(ssg),112), S("s_add_u32",s(st0),s(st0),s(st3)), V("v_add_u32",v(g1280),s(st0),v(g1280)),
        V("v_lshl_add_u32",v(aKr0),v(o0),4,v(g1280)), V("v_lshl_add_u32",v(aKr1),v(o1),4,v(g1280))]
    P+=off_of(o0,o1,l4)
    P+=[S("s_mul_i32",s(st1),s(ssg),56), S("s_add_u32",s(st1),s(st1),s(st3)), S("s_add_u32",s(st1),s(st1),5120),
        V("v_add_u32",v(c704),s(st1),v(c704)),
        V("v_lshl_add_u32",v(aV00),v(o0),3,v(c704)), V("v_lshl_add_u32",v(aV01),v(o1),3,v(c704)),
        S("s_add_u32",s(st0),s(st0),3840), V("v_lshl_add_u32",v(ta),v(cc),3,s(st0)),
        V("v_lshl_add_u32",v(aV10),v(o0),4,v(ta)), V("v_lshl_add_u32",v(aV11),v(o1),4,v(ta)),
        V("v_mov_b32",v(tb),ONES), V("v_cmp_gt_u32","vcc",2,v(cc)),
        V("v_cndmask_b32",v(aV10),v(tb),v(aV10),"vcc"), V("v_cndmask_b32",v(aV11),v(tb),v(aV11),"vcc")]
    qr,qc=next(ti),next(ti)
    P+=[V("v_min_u32",v(ta),13,v(li)), V("v_add_u32",v(qr),9,v(ta)), V("v_lshrrev_b32",v(qr),4,v(qr)),
        V("v_mad_i32_i24",v(qc),v(qr),-7,v(ta))]
    P+=[S("s_mul_i32",s(st0),s(ssg),7), S("s_add_u32",s(st1),s(st0),63),
        V("v_mad_u32_u24",v(ta),v(qr),20,v(qc)), V("v_add_u32",v(ta),s(st1),v(ta))]
    for par in range(2):
        if par: P+=[V("v_add_u32",v(ta),40,v(ta))]
        P+=[V("v_lshrrev_b32",v(tb),4,v(ta)), V("v_mul_u32_u24",v(tb),3072,v(tb)), V("v_and_b32",v(tc),15,v(ta)),
            V("v_lshl_add_u32",v(tb),v(tc),4,v(tb)), V("v_lshl_add_u32",v(aQx[par]),v(lg),8,v(tb))]
    P+=[V("v_mov_b32",v(ta),f32(QSCALE)), V("v_cmp_gt_u32","vcc",3,v(lg)), V("v_cndmask_b32",v(qs),0,v(ta),"vcc"),
        V("v_mov_b32",v(tmax),0)]
    P+=[S("s_add_u32",s(sjb),s(sc0),s(st0)), S("s_add_u32",s(sjb),s(sjb),3)]
    P+=[S("s_bfe_u32",s(st0),s(sw),"0x10001"), S("s_mul_i32",s(st0),s(st0),7), S("s_add_u32",s(st0),s(st0),s(sc0)), S("s_add_u32",s(st0),s(st0),3),
        V("v_add_u32",v(ta),s(st0),v(qc)),
        S("s_mul_i32",s(st1),s(snh),96), V("v_add_u32",v(tb),s(st1),v(gb)),
        V("v_mad_u32_u24",v(ta),v(ta),s(s384),v(tb)),
        S("s_mul_i32",s(st1),s(sflip),12), S("s_add_u32",s(st1),s(st1),s(sr0)), S("s_add_u32",s(st1),s(st1),3),
        V("v_add_u32",v(tb),s(st1),v(qr)), V("v_mad_i32_i24",v(ta),v(tb),s(sstr),v(ta)),
        V("v_mov_b32",v(tb),"0x80000000"), V("v_cmp_gt_u32","vcc",14,v(li)), V("v_cndmask_b32",v(aS1),v(tb),v(ta),"vcc")]
    for k4 in range(4):
        P+=[S("s_add_u32",s(st0),s(ssg),2*k4-1) if k4 else S("s_mov_b32",s(st0),0),
            S("s_sub_u32",s(st1),6,s(st0)), S("s_cmp_eq_u32",s(sflip),1), S("s_cselect_b32",s(st0),s(st1),s(st0)),
            S("s_mul_i32",s(sSO+k4),s(st0),172032)]
    wa,wb_,wc,wqa,wqb,rp,g02=[next(ti) for _ in range(7)]
    P+=[V("v_lshrrev_b32",v(ta),5,v(lane)), V("v_mul_u32_u24",v(rp),9216,v(ta)),
        V("v_bfe_u32",v(ta),v(lane),4,1), V("v_lshlrev_b32",v(g02),1,v(ta)),
        V("v_lshl_add_u32",v(rp),v(ta),9,v(rp)), V("v_bfe_u32",v(ta),v(lane),2,2), V("v_lshl_add_u32",v(rp),v(ta),6,v(rp)),
        V("v_add_u32",v(rp),WB,v(rp)), S("s_mul_i32",s(st0),s(sh),3)]
    def waddr(dst,u,tw,half):
        q=[V("v_lshrrev_b32",v(tb),2,v(u)), V("v_lshl_add_u32",v(dst),v(tb),10,v(rp)),
           V("v_and_b32",v(tb),3,v(u)), V("v_xor_b32",v(tb),v(tb),v(g02))]
        if tw==1: q+=[V("v_xor_b32",v(tb),1,v(tb))]
        elif tw is not None: q+=[V("v_xor_b32",v(tb),v(tb),v(tw))]
        q+=[V("v_lshl_add_u32",v(dst),v(tb),4,v(dst)), V("v_lshl_add_u32",v(dst),v(half),3,v(dst))]
        return q
    c1,c3=next(ti),next(ti)
    P+=[V("v_lshrrev_b32",v(c1),1,v(cc)), V("v_and_b32",v(c3),v(c1),v(cc)),
        V("v_add_u32",v(ta),s(st0),v(cc))]
    P+=waddr(wqa,ta,None,c1)+[V("v_xor_b32",v(wqb),8,v(wqa))]
    P+=[V("v_mad_u32_u24",v(ta),v(c3),11,v(ta)), V("v_add_u32",v(ta),12,v(ta))]
    P+=waddr(wa,ta,c3,c1)+[V("v_xor_b32",v(wb_),8,v(wa))]
    P+=[V("v_add_u32",v(ta),s(st0),v(c1)), V("v_add_u32",v(ta),24,v(ta)), V("v_and_b32",v(tc),1,v(cc))]
    P+=waddr(wc,ta,1,tc)
    ba=[next(ti) for _ in range(7)]
    lo,base0,qc3,g3,ninf=[next(ti) for _ in range(5)]
    P+=[S("s_sub_u32",s(st0),s(sjb),3), V("v_add_u32",v(ta),s(st0),v(qc)), V("v_max_i32",v(ta),0,v(ta)), V("v_min_i32",v(ta),105,v(ta)),
        V("v_subrev_u32",v(lo),s(st0),v(ta)),
        S("s_lshl_b32",s(st0),s(sh),10), S("s_add_u32",s(st0),s(st0),TB+192),
        V("v_lshlrev_b32",v(ta),6,v(qr)), V("v_sub_u32",v(base0),s(st0),v(ta)),
        V("v_sub_u32",v(qc3),3,v(qc)),
        V("v_lshrrev_b32",v(g3),1,v(lg)), V("v_and_b32",v(g3),v(g3),v(lg)),
        V("v_mov_b32",v(ninf),"0xff800000")]
    for j in range(7):
        t,r=divmod(j,4)
        if t==0:
            if r==0: P+=[V("v_lshlrev_b32",v(ta),2,v(lg))]
            else: P+=[V("v_sub_u32",v(ta),v(lg),v(g3)), V("v_lshl_add_u32",v(ta),v(ta),2,r)]
        elif r<2: P+=[V("v_lshl_add_u32",v(ta),v(lg),1,r)]
        else: P+=[V("v_lshlrev_b32",v(tb),3,v(lg)), V("v_lshrrev_b32",v(ta),v(tb),v(kv[0])) , V("v_and_b32",v(ta),255,v(ta))]
        if j==5: P+=[V("v_mov_b32",v(kv[0]),"0x6408640c")]
        P+=[V("v_sub_u32",v(tb),v(ta),v(lo)), V("v_add_u32",v(ta),v(ta),v(qc3)), V("v_cmp_gt_u32","vcc",7,v(tb)),
            V("v_cndmask_b32",v(ta),13,v(ta),"vcc"), V("v_lshl_add_u32",v(ba[j]),v(ta),2,v(base0))]
        if t==0 and r>0: P+=[V("v_lshl_add_u32",v(ba[j]),v(g3),6,v(ba[j]))]
    P+=[S("s_lshl_b32",s(st0),s(sh),10), S("s_lshl_b32",s(st1),s(ssg),8), S("s_add_u32",s(st0),s(st0),s(st1)), S("s_add_u32",s(st0),s(st0),TB),
        V("v_lshl_add_u32",v(re),v(lane),2,s(st0)), V("v_cmp_gt_u32","vcc",13,v(li))]
    for m,rb in enumerate((rb0,rb1)):
        P+=[V("v_lshlrev_b32",v(rb),16,v(rb)), V("v_mul_f32",v(rb),f32(LOG2E),v(rb)), V("v_cndmask_b32",v(rb),v(ninf),v(rb),"vcc"),
            DSW("ds_write_b32",re,rb,1,512*m,before=1)]
    P+=[V("v_mov_b32",v(tb),FLAG), DSW("ds_write_b32",tb,tmax,1,0,before=1)]
    P+=[BAR(1)]
    for n,ad in enumerate((wa,wb_,wc)):
        for ks in range(3):
            for e in range(2):
                P+=[DSR("ds_read_b64_tr_b16",Wkv(n,ks)+2*e,2,ad,ks*18432+e*256,after=1,before=2)]
    xset=[XA,XA] if safe else [XA,XB]
    xi=[0]
    def nextx():
        xi[0]^=1; return xset[xi[0]^1]
    def landed(tile): return 1 if tile<8 else (3 if tile<16 else 4)
    def xreads(X,k,jj2,extra):
        se=1-(k&1)
        t0=5*k+(4-se if extra else 2*jj2)
        bump=30720 if k>=2 else 0
        return [DSR("ds_read_b128",X+4*ks,4,aX,3072*t0+1024*ks-bump,after=landed(min(t0+1,24)),before=k+3) for ks in range(3)]
    def prodcore(X,k,jj2,extra,acc=ACC):
        se=1-(k&1); buf=(k&1)*BS
        q=[]
        for n in range(3):
            for ks in range(3):
                q+=[MF(acc+4*n,Wkv(n,ks),X+4*ks,None if ks==0 else acc+4*n)]
        for j in range(6):
            dst=acc+j if j<4 else acc+4+j
            q+=[V("v_cvt_pk_bf16_f32",v(dst),v(acc+2*j),v(acc+2*j+1))]
        px=(4-se)*16 if extra else 32*jj2
        q+=[DSW("ds_write_b128",aKw,acc,4,buf+px*16,after=k+2,before=k+3), DSW("ds_write_b64",aVw,acc+8,2,buf+px*8,after=k+2,before=k+3)]
        return q
    def prod(k,jj2,acc=ACC):
        X=nextx(); return xreads(X,k,jj2,False)+prodcore(X,k,jj2,False,acc)
    def prodx(k):
        X=nextx(); se=1-(k&1)
        return xreads(X,k,0,True)+[MACRO([S("s_cmp_eq_u32",s(ssg),se)],"s_cbranch_scc0",schedule(prodcore(X,k,0,True)))]
    def mulq(r,src):
        if OPT["pk"]:
            i=V("v_pk_mul_f32",vr(r,2),vr(r,2),vr(src,2),mod="op_sel_hi:[1,0]"); i.vu=i.vu-{src+1}|{r,r+1}
            return [i]
        return [V("v_mul_f32",v(r),v(src),v(r)), V("v_mul_f32",v(r+1),v(src),v(r+1))]
    def qproj(sx,acc=ACC):
        X=nextx(); q=[]
        tl=(99+40*sx)//16
        q+=[DSR("ds_read_b128",X+4*ks,4,aQx[sx&1],(sx>>1)*15360+1024*ks,after=landed(tl),before=3 if sx==0 else 5) for ks in range(3)]
        for n in range(2):
            for ks in range(3): q+=[MF(acc+4*n,Wq(n,ks),X+4*ks,None if ks==0 else acc+4*n)]
        for j in range(4):
            q+=mulq(acc+2*j,qs)+[V("v_cvt_pk_bf16_f32",v(Qr(sx)+j),v(acc+2*j),v(acc+2*j+1))]
        return q
    def kload(p):
        k=p>>1; o=(k&1)*BS+640*(p&1)
        return [DSR("ds_read_b128",KB+8*(p&1)+4*t,4,aKr[t],o,after=k+3,before=k+4) for t in range(2)]
    def vload(p):
        k=p>>1; b=(k&1)*BS
        return ([DSR("ds_read_b64_tr_b16",VB+2*t,2,aV0[t],b+320*(p&1),after=k+3,before=k+4) for t in range(2)]+
                [DSR("ds_read_b64_tr_b16",VB+4+2*t,2,aV1[t],b+640*(p&1),after=k+3,before=k+4) for t in range(2)])
    qi=[0]
    MX=XB; T1,T2=XB+4,XB+5
    def qu(p,sx):
        b=p-sx; qi[0]^=1; Sr=SB+8*qi[0]; Pr=PB+4*qi[0]; O=Or(sx)
        c0,c1_=BIAS+8*b,BIAS+8*b+4
        if (sx,b)==(0,0): c0,c1_=Ca,Ca+4
        if (sx,b)==(0,1): c0=Cb
        if (sx,b)==(1,0): c0=Cc
        K=KB+8*(p&1)
        q=[MF(Sr,K,Qr(sx),c0), MF(Sr+4,K+4,Qr(sx),c1_)]
        if safe:
            m=MX+(sx%4)
            q+=[V("v_max3_f32",v(T1),v(Sr),v(Sr+1),v(Sr+2)), V("v_max3_f32",v(T1),v(T1),v(Sr+3),v(Sr+4)), V("v_max3_f32",v(T1),v(T1),v(Sr+5),v(Sr+6)),
                V("v_mov_b32",v(T2),v(T1)), V("v_permlane32_swap_b32",v(T1),v(T2)), V("v_max_f32",v(T1),v(T1),v(T2)),
                V("v_mov_b32",v(T2),v(T1)), V("v_permlane16_swap_b32",v(T1),v(T2))]
            if b==0: q+=[V("v_max_f32",v(m),v(T1),v(T2))]
            else:
                q+=[V("v_max3_f32",v(T1),v(T1),v(T2),v(m)), V("v_sub_f32",v(T2),v(m),v(T1)), V("v_exp_f32",v(T2),v(T2)), V("v_mov_b32",v(m),v(T1))]
                q+=[V("v_mul_f32",v(O+j),v(T2),v(O+j)) for j in range(8)]
            q+=[V("v_sub_f32",v(Sr+j),v(Sr+j),v(m)) for j in range(7)]
        for j in range(7):
            q+=[V("v_exp_f32",v(Sr+j),v(Sr+j))]
            if j&1: q+=[V("v_cvt_pk_bf16_f32",v(Pr+j//2),v(Sr+j-1),v(Sr+j))]
        q+=[V("v_cvt_pk_bf16_f32",v(Pr+3),v(Sr+6),0)]
        q+=[MF(O,VB,Pr,None if b==0 else O), MF(O+4,VB+4,Pr,None if b==0 else O+4)]
        return q
    def norm(sx):
        O=Or(sx); bk={0:5,1:6,2:6,3:7,4:7,5:8,6:8}[sx]
        q=[V("v_permlane32_swap_b32",v(O+4),v(O+6)), V("v_permlane32_swap_b32",v(O+5),v(O+7)), V("v_rcp_f32",v(O+6),v(O+6))]
        if not safe: q+=[V("v_max3_f32",v(tmax),v(tmax),v(O+6),v(O+7))]
        for j in range(3):
            q+=mulq(O+2*j,O+6)+[V("v_cvt_pk_bf16_f32",v(O+j),v(O+2*j),v(O+2*j+1))]
        q+=[DSW("ds_write_b64",aOw1,O,2,(2*sx+2)*3072,after=bk-1,before=bk), DSW("ds_write_b32",aOw2,O+2,1,(2*sx+2)*3072,after=bk-1,before=bk)]
        return q
    def oreads(X,k4): return [DSR("ds_read_b128",X+4*ks,4,aOr,4*k4*3072+1024*ks,after=k4+5) for ks in range(3)]
    def outcore(X,k4,acc=ACC):
        q=[]
        for n in range(3):
            for ks in range(3): q+=[MF(acc+4*n,Wq(n,ks),X+4*ks,None if ks==0 else acc+4*n)]
        for j in range(6):
            dst=acc+j if j<4 else acc+4+j
            q+=[V("v_cvt_pk_bf16_f32",v(dst),v(acc+2*j),v(acc+2*j+1))]
        q+=[VST("buffer_store_dwordx4",acc,4,aS1,sO,s(sSO+k4),0,flags=OPT["store_flags"]),
            VST("buffer_store_dwordx2",acc+8,2,aS2,sO,s(sSO+k4),64,flags=OPT["store_flags"])]
        return q
    def outp(k4):
        X=nextx()
        if k4==0:
            return oreads(X,0)+[MACRO([S("s_cmp_eq_u32",s(ssg),1)],"s_cbranch_scc0",schedule(outcore(X,0)))]
        return oreads(X,k4)+outcore(X,k4)
    p0=prod(0,0)
    P+=p0[:3]
    for n,ad in enumerate((wqa,wqb)):
        for ks in range(3):
            for e in range(2):
                P+=[DSR("ds_read_b64_tr_b16",Wq(n,ks)+2*e,2,ad,ks*18432+e*256,after=1,before=2)]
    P+=p0[3:-2]
    P+=[BAR(2)]
    P+=p0[-2:]
    P+=[V("v_mov_b32",v(kv[0]),"0x3f803f80"), V("v_mov_b32",v(kv[1]),"0x3f803f80"), V("v_mov_b32",v(tb),ONES)]
    assert kv[0]%2==0 and kv[1]==kv[0]+1
    for o in (0,640,BS,BS+640): P+=[DSW("ds_write_b64",tb,kv[0],2,o,after=2,before=3)]
    P+=prod(0,1)
    for b in range(5):
        for j in range(7):
            rho=64 if j>=4 else 0
            P+=[DSR("ds_read_b32",(BIAS+8*b if b<4 else Ca)+j,1,ba[j],128*b+rho,after=1,before=3)]
    P+=qproj(0)
    def setm(r,lo_,hi_): return [S("s_mov_b32",s(r),"0x%08x"%lo_), S("s_mov_b32",s(r+1),"0x%08x"%hi_)]
    def cnd(d,a,b_,m): return V("v_cndmask_b32",v(d),v(a),v(b_),sr(m,2))
    P+=setm(sMa,0xFF80FF80,0xFF80FF80)+setm(sMb,0xFF80FF80,0x0000FF80)
    P+=[cnd(BIAS+j,BIAS+j,ninf,sMa if j==0 else sMb) for j in range(4)]
    P+=[S("s_cmp_eq_u32",s(sty),0), S("s_cselect_b64",sr(sMa,2),-1,0), S("s_mov_b32",s(sMb),s(sMa)), S("s_and_b32",s(sMb+1),s(sMa),"0xffff")]
    P+=[cnd(Ca+j,BIAS+j,Ca+j,sMa) for j in range(7)]
    P+=[cnd(Cb+j,BIAS+8+j,ninf,sMa if j==0 else sMb) for j in range(4)]
    P+=[cnd(Cc+j,BIAS+j,ninf,sMa if j==0 else sMb) for j in range(4)]
    P+=setm(sMc,0,0x007F0000)+setm(sMd,0x007F007F,0x007F007F)
    P+=[S("s_andn2_b64",sr(sMb,2),sr(sMc,2),sr(sMa,2)), S("s_andn2_b64",sr(sMa,2),sr(sMd,2),sr(sMa,2))]
    P+=[cnd(BIAS+24+j,BIAS+24+j,ninf,sMb if j<4 else sMa) for j in range(1,7)]
    P+=prodx(0)
    P+=[BAR(3)]
    P+=kload(0)+vload(0)+kload(1)
    P+=qproj(1)+qu(0,0)+vload(1)+prod(1,0)+qu(1,0)+prod(1,1)+qproj(2)+prodx(1)
    P+=[V("v_add_u32",v(aX),30720,v(aX))]
    P+=[BAR(4)]
    P+=kload(2)+qu(1,1)+vload(2)+kload(3)+qproj(3)
    P+=qu(2,0)+prod(2,0)+qu(2,1)+qproj(4)+qu(2,2)+vload(3)+prod(2,1)+qu(3,0)+norm(0)+qproj(5)+qu(3,1)+qproj(6)+prodx(2)
    P+=[BAR(5)]
    P+=kload(4)+qu(3,2)
    tA,tB,tC,tD=ACC,ACC+1,ACC+2,ACC+3
    P+=[V("v_add_u32",v(aOr),s(sdOr),v(aX)),
        V("v_bfe_u32",v(tA),v(aX),8,2), V("v_mad_i32_i24",v(aS2),v(tA),-8,v(aS1)),
        V("v_bfe_u32",v(tA),v(aX),4,2),
        V("v_and_b32",v(tB),"0x3c0",v(aX)), V("v_add_u32",v(tB),WOB,v(tB)),
        S("s_mul_i32",s(st0),s(snh),6), V("v_add_u32",v(tC),s(st0),v(tA)),
        V("v_and_b32",v(tD),3,v(tC)), V("v_lshl_add_u32",v(tD),v(tD),4,v(tB)), V("v_lshrrev_b32",v(tC),2,v(tC)), V("v_lshl_add_u32",v(tD),v(tC),10,v(tD)),
        S("s_mul_i32",s(st0),s(snh),1024+32), S("s_add_u32",s(st0),s(st0),1024),
        V("v_lshl_add_u32",v(tC),v(tA),3,v(tB)), V("v_add_u32",v(tC),s(st0),v(tC))]
    slot={(0,0):0,(0,1):1,(1,0):3,(1,1):4,(2,0):2,(2,1):5}
    for n in range(3):
        for ks in range(3):
            for e in range(2):
                P+=[DSR("ds_read_b64_tr_b16",Wq(n,ks)+2*e,2,tD if n<2 else tC,slot[(ks,e)]*3072+(8 if n==1 else 0),after=1)]
    P+=qu(3,3)+vload(4)+kload(5)
    P+=qu(4,1)+norm(1)+prod(3,0)+qu(4,2)
    P+=[V("v_mov_b32",v(aQx1),"0xff800000")]+[cnd(BIAS+24+j,BIAS+24+j,aQx1,sMc if j<4 else sMd) for j in range(1,7)]
    P+=qu(4,3)+prod(3,1)+qu(4,4)+vload(5)+qu(5,2)+norm(2)+prodx(3)+outp(0)+qu(5,3)
    P+=[BAR(6)]
    P+=kload(6)+qu(5,4)+outp(1)+qu(5,5)+vload(6)+kload(7)
    P+=qu(6,3)+norm(3)+prod(4,0)+qu(6,4)+prod(4,1)+qu(6,5)+qu(6,6)+vload(7)+qu(7,4)+norm(4)+prodx(4)
    P+=[BAR(7)]
    P+=kload(8)+qu(7,5)+outp(2)+qu(7,6)+vload(8)+kload(9)
    P+=qu(8,5)+norm(5)+qu(8,6)+vload(9)+qu(9,6)+norm(6)
    if not safe:
        P+=[V("v_mov_b32",v(WKV),FLAG), V("v_mov_b32",v(WKV+1),1),
            V("v_cmp_nle_f32","vcc",v(tmax),v(WKV+2)) if False else V("v_cmp_nge_f32","vcc",f32(OPT["thr"]),v(tmax)),
            MACRO([RAW("s_nop 4")],"s_cbranch_vccz",[DSW("ds_write_b32",WKV,WKV+1,1,0,before=8)])]
        P[-1].su=P[-1].su|{"vcc"}
    P+=[BAR(8)]
    if not safe: P+=[DSR("ds_read_b32",WKV+2,1,WKV,0,after=8)]
    P+=outp(3)
    return P

def build():
    fast=common_setup()+body(False)
    fs=schedule(fast,window=OPT["window"],mf_gap=OPT["mf_gap"],verbose=True)
    fs+=[V("v_readfirstlane_b32","s52",vr(WKV+2)), S("s_cmp_eq_u32","s52",1 if OPT["force_safe"]=="inv" else 0)]
    pro=""; epi=""
    if OPT["prof"]:
        fs2=[]
        nd=0; k=[0]
        def stamp():
            k[0]+=1; fs2.append(RAW(f"s_memtime s[{72+2*k[0]}:{73+2*k[0]}]"))
        for x in fs:
            if OPT["prof"]==2 and x.kind=="valu" and x.text.startswith("v_lshlrev_b32") and ", 16," in x.text and k[0]==4:
                stamp(); fs2.append(x); stamp(); continue
            fs2.append(x)
            if OPT["prof"]==2:
                if x.kind=="raw" and "lgkmcnt(0)" in x.text: stamp()
                if x.kind=="dma":
                    nd+=1
                    if nd in(3,12,19): stamp()
                if x.kind=="bar" and x.bar in(1,2): stamp()
            elif x.kind=="bar": stamp()
        fs=fs2
        pro="    s_memtime s[72:73]\n    s_memrealtime s[92:93]\n    s_load_dwordx4 s[8:11], s[0:1], 40\n"
        e=["s_waitcnt vmcnt(0)","s_memtime s[90:91]","s_memrealtime s[94:95]","s_waitcnt lgkmcnt(0)",
           "s_mov_b32 s12, s10","s_mov_b32 s13, s11","s_mov_b32 s14, 0x1000000","s_mov_b32 s15, 0x00020000",
           "s_mov_b32 s10, 256","s_mov_b32 s11, 0x00020000","v_mov_b32 v1, 0"]
        for k in range(12): e.append(f"v_writelane_b32 v1, s{72+2*k}, {k}")
        e+=["s_getreg_b32 s72, hwreg(HW_REG_XCC_ID)","s_getreg_b32 s73, hwreg(HW_REG_HW_ID)","s_nop 1","v_writelane_b32 v1, s72, 12","v_writelane_b32 v1, s73, 13"]
        e+=["s_lshl_b32 s52, s2, 3",f"s_add_u32 s52, s52, s{sw}","s_lshl_b32 s52, s52, 6",
            "v_mbcnt_lo_u32_b32 v2, -1, 0","v_mbcnt_hi_u32_b32 v2, -1, v2","v_lshlrev_b32 v3, 2, v2","v_mov_b32 v4, 0x80000000","v_cmp_gt_u32 vcc, 16, v2","s_nop 1","v_cndmask_b32 v3, v4, v3, vcc",
            "buffer_store_dword v1, v3, s[12:15], s52 offen",
            "s_not_b32 s92, s92","s_sub_u32 s53, s90, s74","v_mov_b32 v5, 0","v_writelane_b32 v5, s92, 0","v_writelane_b32 v5, s94, 1", "v_writelane_b32 v5, s53, 2",
            "v_cmp_gt_u32 vcc, 3, v2","v_lshlrev_b32 v3, 2, v2","s_nop 1","v_cndmask_b32 v3, v4, v3, vcc",
            "buffer_atomic_umax v5, v3, s[8:11], 0 offen",
            "s_waitcnt vmcnt(0)"]
        epi="\n".join("    "+x for x in e)+"\n"
    ft=emit(insert_nops(insert_waits(flatten(fs,"f"))))
    ss=schedule(body(True),window=OPT["window"],verbose=True)
    st=emit(insert_nops(insert_waits(flatten(ss,"s"))))
    hdr=open("cdna_kernels/%s.s.ref"%NAME).read().split("; Override")[0]
    return f"""{hdr}; @launch grid=(256,1,1) block=(512,1,1) lds={LDS_TOTAL}
.amdgcn_target "amdgcn-amd-amdhsa--gfx950"
.text
.globl {NAME}_kernel
.p2align 8
.type {NAME}_kernel,@function
{NAME}_kernel:
{pro}    s_load_dwordx2 s[{sX}:{sX+1}], s[0:1], 0
    s_load_dwordx4 s[4:7], s[0:1], 8
    s_load_dwordx2 s[{sR}:{sR+1}], s[0:1], 24
    s_load_dwordx2 s[{sO}:{sO+1}], s[0:1], 32
    s_cmp_ge_u32 s2, 256
    s_cbranch_scc1 L_end
{ft}
    s_cbranch_scc1 L_fin
    s_waitcnt vmcnt(0) lgkmcnt(0)
    s_barrier
{st}
L_fin:
{epi}L_end:
    s_endpgm
.section .rodata,"a"
.p2align 6
.amdhsa_kernel {NAME}_kernel
  .amdhsa_next_free_vgpr 256
  .amdhsa_next_free_sgpr 96
  .amdhsa_accum_offset 256
  .amdhsa_group_segment_fixed_size 0
  .amdhsa_kernarg_size 56
  .amdhsa_user_sgpr_count 2
  .amdhsa_user_sgpr_kernarg_segment_ptr 1
  .amdhsa_system_sgpr_workgroup_id_x 1
.end_amdhsa_kernel
"""
txt=build()
open(sys.argv[1],"w").write(txt)
```

```python
import re

class I:
    __slots__ = ("text","kind","vd","vu","sd","su","a","b","c","d","after","before","bar","body","cond",
                 "idx","prio","wide","opt","pin","note","vmwait","lc")
    def __init__(s, text, kind, vd=(), vu=(), sd=(), su=(), **kw):
        s.text=text; s.kind=kind
        s.vd=frozenset(vd); s.vu=frozenset(vu); s.sd=frozenset(sd); s.su=frozenset(su)
        s.a=s.b=s.c=s.d=frozenset()
        s.after=None; s.before=None; s.bar=None; s.body=None; s.cond=None
        s.idx=0; s.prio=0; s.wide=False; s.opt=None; s.pin=False; s.note=None; s.vmwait=None; s.lc=None
        for k,v in kw.items(): setattr(s,k,v)
    def __repr__(s): return s.text

def R(base, n=1): return list(range(base, base+n))
def vr(base, n=1): return f"v{base}" if n==1 else f"v[{base}:{base+n-1}]"
def sr(base, n=1): return f"s{base}" if n==1 else f"s[{base}:{base+n-1}]"

_op_re = re.compile(r"^(-?)(?:abs\()?([vs])(?:(\d+)|\[(\d+):(\d+)\])\)?$")
def parse_opnd(o):
    o=o.strip()
    if o in ("vcc","exec","m0","scc"): return set(), {o}
    if o in ("vcc_lo","vcc_hi"): return set(), {"vcc"}
    if o in ("exec_lo","exec_hi"): return set(), {"exec"}
    m=_op_re.match(o)
    if not m: return set(), set()
    lo=int(m.group(3) if m.group(3) is not None else m.group(4)); hi=int(m.group(3) if m.group(3) is not None else m.group(5))
    rs=set(range(lo,hi+1))
    return (rs,set()) if m.group(2)=="v" else (set(),rs)

TRANS=("v_exp_f32","v_rcp_f32","v_log_f32","v_rsq_f32","v_sqrt_f32")
def V(op, *ops, mod="", **kw):
    ops=[str(o) for o in ops]
    text=f"{op} "+", ".join(ops)+((" "+mod) if mod else "")
    vd,sd=parse_opnd(ops[0]); vu=set(); su={"exec"}
    for o in ops[1:]:
        a,b=parse_opnd(o); vu|=a; su|=b
    kind="valu"
    if op.split("_e")[0] in TRANS or op in TRANS: kind="trans"
    if op.startswith("v_permlane"):
        kind="perm"; vd|=vu; vu|=vd
    if op.startswith("v_fmac"): vu|=vd
    if op.startswith("v_readfirstlane") or op.startswith("v_readlane"): kind="rdlane"
    if "partial" in kw:
        kw.pop("partial"); vu|=vd
    return I(text,kind,vd,vu,sd,su,**kw)

def S(op, *ops, **kw):
    ops=[str(o) for o in ops]
    text=f"{op} "+", ".join(ops)
    su=set(); sd=set()
    if op.startswith("s_cmp"):
        srcs=ops; sd={"scc"}
    else:
        _,sd=parse_opnd(ops[0]); srcs=ops[1:]
        if not (op.startswith("s_mov") or op.startswith("s_cselect") or op.startswith("s_mul") ): sd=sd|{"scc"}
    for o in srcs:
        _,b=parse_opnd(o); su|=b
    if op.startswith("s_cselect") or op.startswith("s_addc"): su|={"scc"}
    if op.startswith("s_addk") or op.startswith("s_mulk"): su|=sd
    return I(text,"salu",(),(),sd,su,**kw)

def MF(d,a,b,c=None,**kw):
    cs = "0" if c is None else vr(c,4)
    ins=I(f"v_mfma_f32_16x16x32_bf16 {vr(d,4)}, {vr(a,4)}, {vr(b,4)}, {cs}","mfma",R(d,4),
          R(a,4)+R(b,4)+([] if c is None else R(c,4)),(),{"exec"},**kw)
    ins.a=frozenset(R(a,4)); ins.b=frozenset(R(b,4)); ins.c=frozenset([] if c is None else R(c,4)); ins.d=frozenset(R(d,4))
    return ins

def DSR(op,d,n,addr,off=0,**kw):
    assert 0<=off<65536, off
    return I(f"{op} {vr(d,n)}, v{addr}"+(f" offset:{off}" if off else ""),"dsr",R(d,n),[addr],(),{"exec"},**kw)
def DSW(op,addr,s,n,off=0,**kw):
    assert 0<=off<65536, off
    return I(f"{op} v{addr}, {vr(s,n)}"+(f" offset:{off}" if off else ""),"dsw",(),[addr]+R(s,n),(),{"exec"},**kw)
def DMA(voff,srd,soff,off=0,flags="",**kw):
    _,ss=parse_opnd(str(soff))
    return I(f"buffer_load_dwordx4 v{voff}, {sr(srd,4)}, {soff} offen"+(f" offset:{off}" if off else "")+(" "+flags if flags else "")+" lds","dma",(),[voff],(),set(R(srd,4))|ss|{"m0","exec"},**kw)
def VLD(op,d,n,voff,srd,soff=0,off=0,**kw):
    _,ss=parse_opnd(str(soff))
    return I(f"{op} {vr(d,n)}, v{voff}, {sr(srd,4)}, {soff} offen"+(f" offset:{off}" if off else ""),"vld",R(d,n),[voff],(),set(R(srd,4))|ss|{"exec"},**kw)
def VST(op,s,n,voff,srd,soff=0,off=0,flags="",**kw):
    _,ss=parse_opnd(str(soff))
    return I(f"{op} {vr(s,n)}, v{voff}, {sr(srd,4)}, {soff} offen"+(f" offset:{off}" if off else "")+(" "+flags if flags else ""),"vst",(),[voff]+R(s,n),(),set(R(srd,4))|ss|{"exec"},wide=(n>2),**kw)
def BAR(k,**kw): return I("s_barrier","bar",bar=k,**kw)
def RAW(text,**kw): return I(text,"raw",**kw)

_lbl=[0]
def MACRO(cond_ins, branch_op, body, **kw):
    vd=set();vu=set();sd=set();su=set()
    for i in cond_ins+body:
        vd|=i.vd; vu|=i.vu; sd|=i.sd; su|=i.su
    vu|=vd
    m=I("<macro>","macro",vd,vu,sd|{"scc"},su,**kw)
    m.body=body; m.cond=(cond_ins,branch_op)
    af=[i.after for i in body if i.after is not None]; bf=[i.before for i in body if i.before is not None]
    m.after=max(af) if af else None; m.before=min(bf) if bf else None
    return m

COST={"mfma":8,"trans":8,"valu":4,"perm":4,"rdlane":4,"dsr":4,"dsw":4,"dma":8,"vld":4,"vst":8,"salu":4,"bar":4,"raw":4}
LDS_LAT=140
def macro_cost(m): return sum(16 if i.kind=="mfma" else COST[i.kind] for i in m.body)+LDS_LAT

def lat(p,c,raw_v,war_v,waw_v,raw_s):
    k=p.kind
    if k=="macro": return macro_cost(p)
    if raw_v or waw_v:
        if k=="mfma":
            if c.kind=="mfma" and c.c==p.d and not (p.d&(c.a|c.b)): return 16
            return 40
        if k=="dsr": return LDS_LAT
        if k=="vld": return 2000
        if k in("valu","trans","perm"):
            base=COST[k]
            if c.kind in("mfma","perm"): return base+8
            if k=="trans": return base+4
            return base
    if raw_s and k in("valu","rdlane"): return 16
    if war_v and k=="mfma" and (p.c&c.vd) and c.kind!="mfma": return 20
    return COST.get(k,4)

def schedule(prog, window=400, mf_gap=16, verbose=False):
    n=len(prog)
    for i,x in enumerate(prog): x.idx=i
    preds=[[] for _ in range(n)]; succs=[[] for _ in range(n)]
    lastw_v={}; readers_v={}; lastw_s={}; readers_s={}
    bars={x.bar:x.idx for x in prog if x.kind=="bar"}
    lastbar=None; lastvm=None; lastpin=None
    def edge(p,c,l):
        if p==c: return
        assert p<c,(prog[p],prog[c],p,c)
        preds[c].append((p,l)); succs[p].append(c)
    for i,x in enumerate(prog):
        dep={}
        def add(p,f):
            dep.setdefault(p,set()).add(f)
        for r in x.vu:
            if r in lastw_v: add(lastw_v[r],"raw")
        for r in x.vd:
            if r in lastw_v: add(lastw_v[r],"waw")
            for q in readers_v.get(r,()): add(q,"war")
        for r in x.su:
            if r in lastw_s: add(lastw_s[r],"raws")
        for r in x.sd:
            if r in lastw_s: add(lastw_s[r],"o")
            for q in readers_s.get(r,()): add(q,"o")
        for p,f in dep.items():
            edge(p,i,lat(prog[p],x,"raw" in f,"war" in f,"waw" in f,"raws" in f))
        for r in x.vu: readers_v.setdefault(r,[]).append(i)
        for r in x.vd: lastw_v[r]=i; readers_v[r]=[]
        for r in x.su: readers_s.setdefault(r,[]).append(i)
        for r in x.sd: lastw_s[r]=i; readers_s[r]=[]
        if x.kind=="bar":
            if lastbar is not None: edge(lastbar,i,4)
            lastbar=i
        if x.kind in("dma","vld","vst"):
            if lastvm is not None: edge(lastvm,i,4)
            lastvm=i
        if x.after is not None and x.after in bars: edge(bars[x.after],i,4)
        if x.before is not None and x.before in bars:
            edge(i,bars[x.before], macro_cost(x) if x.kind=="macro" else (LDS_LAT if x.kind in("dsr","dsw") else 4))
        if x.pin:
            for j in range((lastpin or 0),i): edge(j,i,4)
            lastpin=i
        elif lastpin is not None: edge(lastpin,i,4)
    npred=[len(p) for p in preds]
    est=[0]*n
    ready=[i for i in range(n) if npred[i]==0]
    out=[]; t=0; mf_free=0; done=[False]*n; lo=0; stall=0
    while ready:
        while lo<n and done[lo]: lo+=1
        cand=[i for i in ready if i<lo+window]
        def start(i):
            s=max(t,est[i])
            if prog[i].kind=="mfma": s=max(s,mf_free)
            return s
        now=[i for i in cand if start(i)<=t]
        if now:
            def key(i):
                x=prog[i]
                cls=0 if x.kind in("dsr","dma","vld") else (1 if x.kind=="mfma" else 2)
                return (cls if x.kind in("dsr","mfma") else 2, i-x.prio)
            pick=min(now,key=key)
        else:
            pick=min(cand,key=lambda i:(start(i),i))
            stall+=start(pick)-t
            t=start(pick)
        x=prog[pick]
        out.append(x); done[pick]=True; ready.remove(pick)
        x.note=t
        if x.kind=="mfma": mf_free=t+mf_gap
        for c in succs[pick]:
            npred[c]-=1
        for c in set(succs[pick]):
            for (p,l) in preds[c]:
                if p==pick: est[c]=max(est[c],t+l)
            if npred[c]==0 and not done[c] and c not in ready: ready.append(c)
        t+= macro_cost(x) if x.kind=="macro" else COST[x.kind]
    assert len(out)==n,(len(out),n)
    if verbose: print(f"scheduled {n} instrs, model time {t}, stall {stall}")
    return out

class Out:
    def __init__(s): s.items=[]
def flatten(seq, prefix):
    res=[]
    for x in seq:
        if x.kind=="macro":
            _lbl[0]+=1; name=f"L_{prefix}_{_lbl[0]}"
            for c in x.cond[0]: res.append((c,None))
            br=I(f"{x.cond[1]} {name}","salu",su={"scc","vcc"}); res.append((br,None))
            for b in x.body: res.append((b,name))
            res.append((I(f"{name}:","label"),None))
        else: res.append((x,None))
    return res

def insert_waits(flat):
    res=[]; lq=[]; vq=[]
    cur=None; saved=None
    def need(q,pred,seg):
        N=None
        for k in range(len(q)-1,-1,-1):
            if pred(q[k][0]):
                N=sum(1 for e in q[k+1:] if e[1] is None or e[1]==seg); break
        return N
    def retire(q,N,seg):
        keep=[]
        for k,e in enumerate(q):
            y=sum(1 for f in q[k+1:] if f[1] is None or f[1]==seg)
            if y<N: keep.append(e)
        return keep
    for ins,seg in flat:
        if seg!=cur:
            if cur is not None:
                lq=saved[0]+[e for e in lq if e[1]==cur]; vq=saved[1]+[e for e in vq if e[1]==cur]
            if seg is not None: saved=(list(lq),list(vq))
            cur=seg
        if ins.kind=="wait":
            m=re.search(r"vmcnt\((\d+)\)",ins.text)
            if m: vq=retire(vq,int(m.group(1)),seg)
            m=re.search(r"lgkmcnt\((\d+)\)",ins.text)
            if m: lq=retire(lq,int(m.group(1)),seg)
            res.append((ins,seg)); continue
        touch=ins.vu|ins.vd
        if ins.kind=="bar":
            pl=lambda o:o.before is not None and o.before<=ins.bar
            pv=pl
        else:
            pl=lambda o:bool(o.vd&touch); pv=pl
        nl=need(lq,pl,seg); nv=need(vq,pv,seg)
        if ins.vmwait is not None: nv=ins.vmwait if nv is None else min(nv,ins.vmwait)
        w=[]
        if nv is not None:
            nv=min(nv,63); w.append(f"vmcnt({nv})"); vq=retire(vq,nv,seg)
        if nl is not None:
            nl=min(nl,15); w.append(f"lgkmcnt({nl})"); lq=retire(lq,nl,seg)
        if w: res.append((I("s_waitcnt "+" ".join(w),"wait"),seg))
        res.append((ins,seg))
        if ins.kind in("dsr","dsw"): lq.append((ins,seg))
        if ins.kind in("dma","vld","vst"): vq.append((ins,seg))
    return res

VALU=("valu","trans","perm","rdlane")
def hazard(p,c):
    w=0
    if p.kind=="mfma":
        if c.kind=="mfma":
            if p.d&(c.a|c.b): w=max(w,8)
            if p.d&c.c and p.d!=c.c: w=max(w,6)
            if p.d&c.d and p.d!=c.c: w=max(w,6)
        elif c.kind in VALU:
            if p.d&(c.vu|c.vd): w=max(w,8)
            if p.c&c.vd: w=max(w,3)
        elif c.kind in("dsr","dsw","dma","vld","vst"):
            if p.d&(c.vu|c.vd): w=max(w,8)
            if p.c&c.vd: w=max(w,3)
    if p.kind in VALU:
        if c.kind=="mfma":
            if p.vd&c.vu: w=max(w,2)
            if "exec" in p.sd: w=max(w,4)
        if c.kind=="perm" and p.vd&c.vu: w=max(w,2)
        if c.kind=="rdlane" and p.vd&c.vu: w=max(w,1)
        if p.kind=="trans" and c.kind in VALU and p.vd&c.vu: w=max(w,1)
        if p.sd:
            if c.kind in VALU and (p.sd&c.su): w=max(w,2)
            if c.kind in("dma","vld","vst") and (p.sd&c.su): w=max(w,5)
            if c.kind=="salu" and (p.sd&c.su): w=max(w,1)
    if p.kind=="salu" and "m0" in p.sd and c.kind=="dma": w=max(w,1)
    if p.kind=="vst" and p.wide and (p.vu&c.vd): w=max(w,2)
    return w

def states(i):
    if i.kind=="label": return 0
    if i.text.startswith("s_nop"): return int(i.text.split()[1])+1
    return 1

def insert_nops(flat):
    res=[]
    segstart={}
    for ins,seg in flat:
        if seg is not None and seg not in segstart: segstart[seg]=len(res)
        needn=0
        if ins.kind not in("label","wait","bar"):
            stack=[(len(res)-1,0)]
            while stack:
                k,dist=stack.pop()
                while k>=0 and dist<10:
                    p,pseg=res[k]
                    if p.kind=="label":
                        nm=p.text[:-1]
                        if nm in segstart: stack.append((segstart[nm]-1,dist))
                    else:
                        h=hazard(p,ins)
                        if h>dist: needn=max(needn,h-dist)
                    dist+=states(p); k-=1
        if needn: res.append((I(f"s_nop {needn-1}","nop"),seg))
        res.append((ins,seg))
    return res

def emit(flat, notes=True):
    lines=[]
    for ins,seg in flat:
        if ins.kind=="label": lines.append(ins.text)
        else: lines.append("    "+ins.text)
    return "\n".join(lines)
```

```python
import sys, numpy as np
from emu import *
G128=[list(range(0,4))+list(range(12,16))+list(range(20,28)), list(range(4,12))+list(range(16,20))+list(range(28,32))]
G128=G128+[[x+32 for x in g] for g in G128]
def cyc(op,ad,nb):
    ad=ad.astype(np.int64)
    if op=="ds_read_b128": groups,NB=G128,64
    elif op in("ds_read_b64","ds_read_b64_tr_b16"): groups,NB=[range(0,32),range(32,64)],64
    elif op in("ds_read_b32","ds_write_b32"): groups,NB=[range(0,32),range(32,64)],32
    elif op=="ds_write_b64": groups,NB=[range(16*i,16*i+16) for i in range(4)],32
    elif op=="ds_write_b128": groups,NB=[range(8*i,8*i+8) for i in range(8)],32
    else: return 0,0
    tot=0
    for g in groups:
        dw=np.unique((ad[list(g)][:,None]+np.arange(0,nb,4)[None,:])//4)
        tot+=np.bincount(dw%NB,minlength=NB).max()
    return tot,len(groups)
def conflicts(path,b=100):
    prog,labels=parse(path); ins=make_inputs(1); mem=setup(*ins)
    wg,ws,nr=run_wg(prog,labels,mem,b,check=False)
    res={}
    for (w,kind,e0,e1,ad,nb,t,pc) in wg.acc:
        c,base=cyc(t.split()[0],ad,nb); res[(w,pc-1)]=(c,base,t)
    return res
if __name__=="__main__":
    res=conflicts(sys.argv[1],int(sys.argv[2]) if len(sys.argv)>2 else 100)
    agg={}
    import re
    for (w,pc),(c,base,t) in res.items():
        if t.startswith("buffer"): continue
        m=re.findall(r"v\d+(?![\d:])",t); key=(t.split()[0], m[-1] if "read" in t else m[0])
        a=agg.setdefault(key,[0,0,0]); a[0]+=1; a[1]+=base; a[2]+=c-base
    for k,a in sorted(agg.items(),key=lambda x:-x[1][2]): print(k,a)
    print("total base",sum(a[1] for a in agg.values()),"extra",sum(a[2] for a in agg.values()))
```

```python
import random
from asmlib import I, hazard, states, VALU
PORT={"mfma":2,"trans":2,"perm":2,"valu":1,"rdlane":1}
def build_dag(prog):
    n=len(prog); preds=[set() for _ in range(n)]; lat={}
    lastw_v={}; readers_v={}; lastw_s={}; readers_s={}
    bars={x.bar:i for i,x in enumerate(prog) if x.kind=="bar"}
    lastbar=None; lastvm=None; lastpin=None
    def edge(p,c,l):
        if p==c: return
        assert p<c,(prog[p],prog[c],p,c)
        preds[c].add(p); lat[(p,c)]=max(lat.get((p,c),0),l)
    def rawlat(p,c):
        k=p.kind
        if k=="mfma": return 4 if (c.kind=="mfma" and c.c==p.d and not (p.d&(c.a|c.b))) else 16
        if k=="dsr": return 36
        if k=="vld": return 300
        return PORT.get(k,1)+(3 if c.kind in("mfma","perm","dsw","dsr","vst","dma") else 0)
    for i,x in enumerate(prog):
        for r in x.vu:
            if r in lastw_v: edge(lastw_v[r],i,rawlat(prog[lastw_v[r]],x))
        for r in x.vd:
            if r in lastw_v: edge(lastw_v[r],i,rawlat(prog[lastw_v[r]],x))
            for q in readers_v.get(r,()): edge(q,i,2)
        for r in x.su:
            if r in lastw_s: edge(lastw_s[r],i,2)
        for r in x.sd:
            if r in lastw_s: edge(lastw_s[r],i,1)
            for q in readers_s.get(r,()): edge(q,i,1)
        for r in x.vu: readers_v.setdefault(r,[]).append(i)
        for r in x.vd: lastw_v[r]=i; readers_v[r]=[]
        for r in x.su: readers_s.setdefault(r,[]).append(i)
        for r in x.sd: lastw_s[r]=i; readers_s[r]=[]
        if x.kind=="bar":
            if lastbar is not None: edge(lastbar,i,2)
            lastbar=i
        if x.kind in("dma","vld","vst"):
            if lastvm is not None: edge(lastvm,i,4)
            lastvm=i
        if x.after is not None and x.after in bars: edge(bars[x.after],i,2)
        if x.before is not None and x.before in bars: edge(i,bars[x.before],30 if x.kind in("dsr","dsw") else (300 if x.kind=="dma" else 2))
        for q in (x.opt or ()):
            edge(q.idx,i,36 if q.kind=="dsw" else 2)
        x.idx=i
        if x.pin:
            for j in range((lastpin or 0),i): edge(j,i,1)
            lastpin=i
        elif lastpin is not None: edge(lastpin,i,1)
    succs=[[] for _ in range(n)]
    for c in range(n):
        for p in preds[c]: succs[p].append(c)
    cp=[0]*n
    for i in range(n-1,-1,-1):
        cp[i]=max([cp[c]+lat[(i,c)] for c in succs[i]]+[PORT.get(prog[i].kind,1)])
    return preds,succs,cp

class Wv:
    def __init__(s,prog,pre,key):
        s.prog=prog; s.preds,s.succs,s.cp=build_dag(prog)
        s.np=[len(p) for p in s.preds]; s.ready=[i for i,k in enumerate(s.np) if k==0]
        s.out=[]; s.hist=list(pre[-14:]); s.rdy=0; s.dsok=0; s.lq=[]; s.vq=[]; s.atbar=False; s.left=len(prog)
        s.done=[False]*len(prog); s.lo=0; s.key=key; s.hc={}
    def haz(s,c):
        need=0; d=0
        for p in reversed(s.hist):
            if d>=12: break
            h=hazard(p,c)
            if h-d>need: need=h-d
            d+=states(p)
        return need
    def emit(s,x,t):
        x.note=t; s.out.append(x); s.hist.append(x)
        if len(s.hist)>40: del s.hist[:20]
    def take(s,i,t):
        s.emit(s.prog[i],t); s.ready.remove(i); s.done[i]=True; s.left-=1
        for c in s.succs[i]:
            s.np[c]-=1
            if s.np[c]==0: s.ready.append(c)
        while s.lo<len(s.prog) and s.done[s.lo]: s.lo+=1
    def pend(s,x):
        if x.kind=="bar": f=lambda o:o.before is not None and o.before<=x.bar
        else:
            touch=x.vu|x.vd; f=lambda o:bool(o.vd&touch)
        a=b=None
        for o,td in reversed(s.lq):
            if f(o): a=td; break
        for o,td in reversed(s.vq):
            if f(o): b=td; break
        return a,b

DEF=dict(window=260, lds_lat=110, vm_cost=8, vm_lat=700, mode="idx", jitter=0.0, seed=0, barhold=True, cpw=0.0, lqmax=64, maxout=14, wait_ahead=True)
def coschedule(progs, pre, prevm=(), **kw):
    o=dict(DEF); o.update(kw); rnd=random.Random(o["seed"])
    W=[]
    for p in progs:
        w=Wv(p,pre,None)
        mx=max(w.cp)
        w.key=[ (i-x.prio)*(1-o["cpw"]) + o["cpw"]*(mx-w.cp[i])*len(p)/mx + rnd.uniform(-o["jitter"],o["jitter"]) for i,x in enumerate(p)]
        w.vq=[(x,o["vm_lat"]/4-len(prevm)+i) for i,x in enumerate(prevm)]
        W.append(w)
    port=0; pipe=0; wx=0; lds_free=0; t=0; bars=[]
    def cands(w,t):
        res={"M":None,"V":None,"D":None,"S":None,"G":None,"B":None}; waitc=None; hazc=None; pendfuture=False
        lim=w.lo+o["window"]
        for i in sorted((i for i in w.ready if i<lim),key=w.key.__getitem__):
            x=w.prog[i]; k=x.kind
            c="M" if k=="mfma" else "V" if k in VALU else "D" if k in("dsr","dsw") else "G" if k in("dma","vld","vst") else "B" if k=="bar" else "S"
            if res[c] is not None: continue
            a,b=w.pend(x)
            if a is not None or b is not None:
                if max(a or 0,b or 0)<=t:
                    if waitc is None and c!="B": waitc=i
                    if c=="B": res["B"]=i
                else: pendfuture=True
                continue
            if c!="B" and w.haz(x)>0:
                if hazc is None: hazc=i
                continue
            res[c]=i
        return res,waitc,hazc
    def dowait(w,t):
        nl=sum(1 for _,td in w.lq if td>t); nv=sum(1 for _,td in w.vq if td>t)
        parts=[]
        if w.needvm is not None: nv=sum(1 for _,td in w.vq if td>w.needvm)
        if w.needvm is not None: parts.append(f"vmcnt({nv})"); w.vq=w.vq[len(w.vq)-nv:] if nv else []
        if nl<len(w.lq) and nl<=15: parts.append(f"lgkmcnt({nl})"); w.lq=w.lq[len(w.lq)-nl:] if nl else []
        if not parts: return False
        w.emit(I("s_waitcnt "+" ".join(parts),"wait"),t); w.rdy=t+1; return True
    while any(w.left for w in W):
        act=[w for w in W if w.left and not w.atbar and w.rdy<=t]
        info={id(w):cands(w,t) for w in act}
        mfree=port<=t and pipe<=t and wx<=t
        order=list(act)
        if len(order)==2 and mfree and info[id(order[0])][0]["M"] is None and info[id(order[1])][0]["M"] is not None: order.reverse()
        usedL=False; usedS=False
        for w in order:
            res,waitc,hazc=info[id(w)]
            mfree=port<=t and pipe<=t and wx<=t
            K=w.key
            other=[v for v in W if v is not w][0] if len(W)==2 else None
            w.barrdy=res["B"] is not None
            gobar=res["B"] is not None and (not o["barhold"] or other is None or other.atbar or getattr(other,"barrdy",False) or not other.left)
            pick=None
            dsi=res["D"] if (res["D"] is not None and not usedL and w.dsok<=t and lds_free<=4*t+o["lqmax"] and sum(1 for _,td in w.lq if td>t)<o["maxout"]) else None
            gi=res["G"] if (res["G"] is not None and w.dsok<=t) else None
            si=res["S"] if (res["S"] is not None and not usedS) else None
            if gobar: pick=("B",res["B"])
            elif res["M"] is not None and mfree: pick=("M",res["M"])
            elif waitc is not None and o["wait_ahead"] and w.prog[waitc].kind=="mfma" and res["M"] is None and pipe<=t+1: pick=("X",waitc)
            elif dsi is not None and (pipe<=t or port>t or res["V"] is None or w.out[-1].kind in("dsr","dsw","wait","bar")): pick=("D",dsi)
            elif gi is not None and (port>t or res["V"] is None or K[gi]<K[res["V"]]): pick=("G",gi)
            elif si is not None and (port>t or res["V"] is None or K[si]<K[res["V"]]): pick=("S",si)
            elif res["V"] is not None and port<=t:
                if res["D"] is not None and dsi is None and w.dsok>t and K[res["D"]]+o.get("dsurg",60)<K[res["V"]] and pipe<=t+1: pick=None if waitc is None else ("X",waitc)
                else: pick=("V",res["V"])
            elif waitc is not None: pick=("X",waitc)
            elif res["B"] is not None and all(res[c] is None for c in "MVDSG") and hazc is None: pick=("B",res["B"])
            elif hazc is not None and res["V"] is None and res["M"] is None and res["D"] is None: pick=("N",hazc)
            if pick is None: continue
            c,i=pick; x=w.prog[i]
            if c=="B":
                a,b=w.pend(x)
                if a is not None or b is not None:
                    w.needvm=b
                    dowait(w,t); continue
                w.take(i,t); w.atbar=True; w.barrdy=False
            elif c=="X":
                w.needvm=w.pend(x)[1]
                dowait(w,t)
            elif c=="N": w.emit(I("s_nop 0","nop"),t); w.rdy=t+1
            elif c=="M": w.take(i,t); port=t+2; pipe=t+(8 if "32x32" in x.text else 4); w.rdy=t+2
            elif c=="V": n=PORT[x.kind]; w.take(i,t); port=t+n; w.rdy=t+n; w.dsok=t+n+2
            elif c=="D":
                usedL=True; w.take(i,t); op=x.text.split()[0]
                if x.kind=="dsr": svc=x.lc or (4 if "b128" in op else 2); sl=1
                else: sl={"ds_write_b32":2,"ds_write_b64":3,"ds_write_b128":5}[op]; svc=max(x.lc or 0,{"ds_write_b32":4,"ds_write_b64":6,"ds_write_b128":13}[op]); wx=t+sl
                lds_free=max(lds_free,4*t)+4*svc
                w.lq.append((x,(lds_free+o["lds_lat"])/4)); w.rdy=t+sl
            elif c=="G": w.take(i,t); w.rdy=t+o["vm_cost"]; w.vq.append((x,t+o["vm_lat"]/4))
            else: usedS=True; w.take(i,t); w.rdy=t+1
        if any(w.atbar for w in W) and all(w.atbar or not w.left for w in W):
            bars.append(t)
            for w in W: w.atbar=False; w.rdy=t+2
        t+=1
        assert t<40000,"stuck"
    outs=[]
    for w in W:
        r=[]
        for x in w.out:
            if x.kind=="nop" and r and r[-1].kind=="nop" and int(r[-1].text.split()[1])<7: r[-1]=I(f"s_nop {int(r[-1].text.split()[1])+1}","nop")
            else: r.append(x)
        outs.append(r)
    return outs,bars,t
```

```python
import re, sys, numpy as np
np.seterr(all="ignore")
U=np.uint32
def bf16r(x):
    x=np.ascontiguousarray(x,dtype=np.float32); u=x.view(U).astype(np.uint64)
    r=((u+0x7fff+((u>>16)&1))>>16).astype(U)
    nan=np.isnan(x); r=np.where(nan,U(0x7fc0),r)
    return r&U(0xffff)
def bf2f(h): return (h.astype(U)<<U(16)).view(np.float32)
def f(x): return x.view(np.float32)
def u(x): return np.ascontiguousarray(x,dtype=np.float32).view(U)
LANES=np.arange(64,dtype=U)

def parse(path):
    prog=[]; labels={}
    started=False
    for ln in open(path):
        ln=ln.split(";")[0].rstrip()
        if not ln.strip(): continue
        if ln.startswith(".section"): break
        if ln.strip().startswith("."): continue
        if ln.endswith(":"):
            labels[ln[:-1].strip()]=len(prog); started=True; continue
        t=ln.strip(); sp=t.split(None,1); op=sp[0]; rest=sp[1] if len(sp)>1 else ""
        ops=[];cur="";d=0
        for ch in rest:
            if ch=="[": d+=1
            if ch=="]": d-=1
            if ch=="," and d==0: ops.append(cur.strip()); cur=""
            else: cur+=ch
        if cur.strip(): ops.append(cur.strip())
        mods=[]
        if ops and op!="s_waitcnt":
            last=ops[-1].split(); ops[-1]=last[0]; mods=last[1:]
        prog.append((op,ops,mods,t))
    return prog,labels

rx=re.compile(r"^([vs])(?:(\d+)|\[(\d+):(\d+)\])$")
class Mem:
    def __init__(s,bufs):
        s.base={}; s.bufs=[]
        a=0x100000000
        for n,b in bufs:
            s.base[n]=a; s.bufs.append((a,b,n)); a+=(len(b)+0xfffff)&~0xfffff; a+=0x100000
    def find(s,addr):
        for a,b,n in s.bufs:
            if a<=addr<a+len(b)+1: return a,b,n
        raise RuntimeError("bad address %x"%addr)

class Wave:
    def __init__(s,wg,w,wgid,kernarg):
        s.wg=wg; s.w=w
        s.V=np.full((256,64),0xffffffff,dtype=U); s.V[0]=LANES+64*w
        s.S={}; s.S[0]=kernarg&0xffffffff; s.S[1]=kernarg>>32; s.S[2]=wgid
        s.vcc=0; s.scc=0; s.m0=0; s.exhi=0xffffffff; s.pc=0; s.done=False; s.epoch=0
        s.lq=[]; s.vq=[]; s.pend={}; s.spend=set(); s.nins=0
    def sget(s,r):
        if r in s.spend: raise RuntimeError(f"read pending s{r} at {s.cur}")
        if r not in s.S: raise RuntimeError(f"read undefined s{r} at {s.cur}")
        return s.S[r]
    def chk(s,lo,n=1):
        for r in range(lo,lo+n):
            if r in s.pend: raise RuntimeError(f"wave {s.w}: touch pending v{r} ({s.pend[r][3]}) at pc {s.pc}: {s.cur}")
    def reg(s,o):
        m=rx.match(o)
        if not m: return None
        lo=int(m.group(2) if m.group(2) is not None else m.group(3)); hi=int(m.group(2) if m.group(2) is not None else m.group(4))
        return m.group(1),lo,hi-lo+1
    def const(s,o):
        if o.startswith("0x"): return int(o,16)
        if "." in o: return int(np.float32(float(o)).view(U))
        return int(o)&0xffffffff
    def sval(s,o):
        if o=="m0": return s.m0
        if o=="vcc_lo": return s.vcc&0xffffffff
        if o=="vcc_hi": return s.vcc>>32
        r=s.reg(o)
        if r: assert r[0]=="s"; return s.sget(r[1])
        return s.const(o)
    def sval64(s,o):
        if o=="vcc": return s.vcc
        if o=="exec": return (1<<64)-1
        r=s.reg(o)
        if r: return s.sget(r[1])|(s.sget(r[1]+1)<<32)
        c=int(o,0); return c&((1<<64)-1)
    def sset(s,o,v):
        v&=0xffffffff
        if o=="m0": s.m0=v; return
        if o=="exec_hi": s.exhi=v; return
        r=s.reg(o); s.S[r[1]]=v
    def sset64(s,o,v):
        if o=="vcc": s.vcc=v; return
        r=s.reg(o); s.S[r[1]]=v&0xffffffff; s.S[r[1]+1]=(v>>32)&0xffffffff
    def src(s,o,k=0):
        neg=False
        if o.startswith("-v"): neg=True; o=o[1:]
        r=s.reg(o)
        if r and r[0]=="v":
            s.chk(r[1]+k); x=s.V[r[1]+k].copy()
            return x^U(0x80000000) if neg else x
        if r: return np.full(64,s.sget(r[1]+k),dtype=U)
        return np.full(64,s.sval(o),dtype=U)
    def dst(s,o,val,k=0):
        r=s.reg(o); s.chk(r[1]+k); s.V[r[1]+k]=np.asarray(val).astype(U)
    def mask(s,m): return ((np.uint64(m)>>LANES.astype(np.uint64))&np.uint64(1)).astype(bool)
    def setcmp(s,o,b):
        v=0
        for i in np.nonzero(b)[0]: v|=1<<int(i)
        s.sset64(o,v)
    def off(s,mods):
        for m in mods:
            if m.startswith("offset:"): return int(m[7:])
        return 0
    def retire(s,q,n):
        while len(q)>n:
            e=q.pop(0)
            for r in e[0]: s.pend.pop(r,None)
            if e[1] is not None: e[1][3]=s.epoch
            if e[2] is not None: e[2]()
    def ldsacc(s,kind,addrs,nb):
        rec=[s.w,kind,s.epoch,None,addrs.copy(),nb,s.cur,s.pc]; s.wg.acc.append(rec); return rec
    def ldsread(s,addrs,nb):
        L=s.wg.lds; out=np.zeros((64,nb),dtype=np.uint8)
        a=addrs.astype(np.int64)
        if (a+nb>len(L)).any(): raise RuntimeError(f"LDS read OOB {s.cur} {a.max()}")
        assert (a%min(nb,8 if nb==8 else nb)==0).all() or True
        idx=a[:,None]+np.arange(nb)[None,:]
        for e in s.vq:
            if e[1] is not None and np.intersect1d(e[1][4].astype(np.int64)//16, np.unique(idx//16)).size: raise RuntimeError(f"read of own pending DMA at {s.cur}")
        return L[idx]
    def run(s,prog,labels,mem):
        V=s.V
        while True:
            op,o,mods,t=prog[s.pc]; s.cur=t; s.pc+=1; s.nins+=1
            if op=="s_endpgm":
                s.retire(s.lq,0); s.retire(s.vq,0); s.done=True; return
            if op=="s_barrier": s.epoch+=1; return
            if op=="s_nop" or op=="s_setprio" or op=="s_sleep": continue
            if op=="s_waitcnt":
                for m in re.finditer(r"(\w+)\((\d+)\)",t):
                    if m.group(1)=="vmcnt": s.retire(s.vq,int(m.group(2)))
                    if m.group(1)=="lgkmcnt":
                        s.retire(s.lq,int(m.group(2)))
                        if int(m.group(2))==0: s.spend=set()
                continue
            if op.startswith("s_load_dword"):
                n={"s_load_dword":1,"s_load_dwordx2":2,"s_load_dwordx4":4,"s_load_dwordx8":8}[op]
                a=s.sval64(o[1])+s.sval(o[2]); b,buf,_=mem.find(a); assert a+4*n<=b+len(buf); d=s.reg(o[0])[1]
                for i in range(n): s.S[d+i]=int(buf[a-b+4*i:a-b+4*i+4].view(U)[0]); s.spend.add(d+i)
                continue
            if op.startswith("s_cbranch") or op=="s_branch":
                c={"s_cbranch_scc0":s.scc==0,"s_cbranch_scc1":s.scc==1,"s_cbranch_vccz":s.vcc==0,"s_cbranch_vccnz":s.vcc!=0,"s_branch":True}[op]
                if c: s.pc=labels[o[0]]
                continue
            if op.startswith("s_"):
                sg=lambda x:x-(1<<32) if x>>31 else x
                if op.startswith("s_cmp"):
                    a,b=s.sval(o[0]),s.sval(o[1])
                    if op.endswith("i32"): a,b=sg(a),sg(b)
                    k=op.split("_")[2]
                    s.scc=int({"eq":a==b,"lg":a!=b,"lt":a<b,"ge":a>=b,"gt":a>b,"le":a<=b}[k]); continue
                if op in("s_mov_b32","s_movk_i32"): s.sset(o[0],s.sval(o[1])); continue
                if op=="s_mov_b64": s.sset64(o[0],s.sval64(o[1])); continue
                if op=="s_cselect_b32": s.sset(o[0],s.sval(o[1]) if s.scc else s.sval(o[2])); continue
                if op=="s_cselect_b64": s.sset64(o[0],s.sval64(o[1]) if s.scc else s.sval64(o[2])); continue
                if op in("s_andn2_b64","s_and_b64","s_or_b64"):
                    a,b=s.sval64(o[1]),s.sval64(o[2])
                    r={"s_andn2_b64":a&~b,"s_and_b64":a&b,"s_or_b64":a|b}[op]&((1<<64)-1); s.sset64(o[0],r); s.scc=int(r!=0); continue
                if op in("s_addk_i32","s_mulk_i32"):
                    a=s.sval(o[0]); b=s.sval(o[1]); s.sset(o[0],a+b if op=="s_addk_i32" else sg(a)*sg(b)); continue
                a,b=s.sval(o[1]),s.sval(o[2])
                if op in("s_add_u32","s_add_i32"): r=a+b; s.scc=int(r>>32!=0)
                elif op in("s_sub_u32","s_sub_i32"): r=a-b; s.scc=int(r<0)
                elif op=="s_mul_i32": r=sg(a)*sg(b)
                elif op=="s_lshl_b32": r=(a<<(b&31))&0xffffffff; s.scc=int(r!=0)
                elif op=="s_lshr_b32": r=a>>(b&31); s.scc=int(r!=0)
                elif op=="s_and_b32": r=a&b; s.scc=int(r!=0)
                elif op=="s_or_b32": r=a|b; s.scc=int(r!=0)
                elif op=="s_xor_b32": r=a^b; s.scc=int(r!=0)
                elif op=="s_andn2_b32": r=a&~b; s.scc=int(r!=0)
                elif op=="s_bfe_u32": r=(a>>(b&31))&((1<<((b>>16)&127))-1); s.scc=int(r!=0)
                elif op.startswith("s_lshl") and op.endswith("_add_u32"): r=(a<<int(op[6]))+b
                elif op=="s_min_u32": r=min(a,b)
                elif op=="s_max_u32": r=max(a,b)
                elif op=="s_max_i32": r=max(sg(a),sg(b))
                else: raise RuntimeError("unimpl "+t)
                s.sset(o[0],r); continue
            if s.exhi!=0xffffffff and not (op.startswith("buffer_load") and "lds" in mods): raise RuntimeError("vector op under partial exec: "+t)
            if op.startswith("v_mfma"):
                d=s.reg(o[0])[1]; a=s.reg(o[1])[1]; b=s.reg(o[2])[1]
                if op=="v_mfma_f32_16x16x32_bf16":
                    s.chk(d,4); s.chk(a,4); s.chk(b,4)
                    def frag(r):
                        x=V[r:r+4]
                        h=np.stack([x&U(0xffff),x>>U(16)],axis=1).reshape(8,64)
                        m=bf2f(h).reshape(8,4,16)
                        return m.transpose(2,1,0).reshape(16,32).astype(np.float64)
                    D=frag(a)@frag(b).T
                    Dl=D.reshape(4,4,16).transpose(1,0,2).reshape(4,64)
                    if o[3]!="0":
                        c=s.reg(o[3])[1]; s.chk(c,4); Dl=Dl+f(V[c:c+4]).astype(np.float64)
                    V[d:d+4]=u(Dl.astype(np.float32))
                elif op=="v_mfma_f32_32x32x16_bf16":
                    s.chk(d,16); s.chk(a,4); s.chk(b,4)
                    def frag(r):
                        x=V[r:r+4]
                        h=np.stack([x&U(0xffff),x>>U(16)],axis=1).reshape(8,64)
                        m=bf2f(h).reshape(8,2,32)
                        return m.transpose(2,1,0).reshape(32,16).astype(np.float64)
                    D=frag(a)@frag(b).T
                    Dl=D.reshape(4,2,4,32).transpose(0,2,1,3).reshape(16,64)
                    if o[3]!="0":
                        c=s.reg(o[3])[1]; s.chk(c,16); Dl=Dl+f(V[c:c+16]).astype(np.float64)
                    V[d:d+16]=u(Dl.astype(np.float32))
                else: raise RuntimeError(t)
                continue
            if op.startswith("v_"):
                op=op.replace("_e64","").replace("_e32","")
                if op=="v_readfirstlane_b32": s.sset(o[0],int(s.src(o[1])[0])); continue
                if op=="v_permlane32_swap_b32":
                    A=s.src(o[0]);B=s.src(o[1]); s.dst(o[0],np.concatenate([A[:32],B[:32]])); s.dst(o[1],np.concatenate([A[32:],B[32:]])); continue
                if op=="v_permlane16_swap_b32":
                    A=s.src(o[0]).reshape(4,16);B=s.src(o[1]).reshape(4,16)
                    s.dst(o[0],np.concatenate([A[0],B[0],A[2],B[2]])); s.dst(o[1],np.concatenate([A[1],B[1],A[3],B[3]])); continue
                if op in("v_pk_mul_f32","v_pk_add_f32"):
                    hi=[1,1]; lo=[0,0]
                    for m in mods:
                        if m.startswith("op_sel_hi:"): hi=eval(m[10:])
                        elif m.startswith("op_sel:"): lo=eval(m[7:])
                    fn=(lambda a,b:a*b) if op=="v_pk_mul_f32" else (lambda a,b:a+b)
                    r0=fn(f(s.src(o[1],lo[0])),f(s.src(o[2],lo[1]))); r1=fn(f(s.src(o[1],hi[0])),f(s.src(o[2],hi[1])))
                    s.dst(o[0],u(r0),0); s.dst(o[0],u(r1),1); continue
                if op.startswith("v_cmp"):
                    a,b=s.src(o[1]),s.src(o[2]); k,ty=op.split("_")[2:4]
                    if ty=="f32": a,b=f(a),f(b)
                    if ty=="i32": a,b=a.view(np.int32),b.view(np.int32)
                    r={"gt":a>b,"lt":a<b,"ge":a>=b,"le":a<=b,"eq":a==b,"ne":a!=b,"nge":~(a>=b),"nle":~(a<=b),"ngt":~(a>b),"nlt":~(a<b)}[k]
                    s.setcmp(o[0],r); continue
                if op=="v_cndmask_b32":
                    s.dst(o[0],np.where(s.mask(s.sval64(o[3])),s.src(o[2]),s.src(o[1]))); continue
                x=[s.src(q) for q in o[1:]]
                i24=lambda z:((z.astype(np.int64)&0xffffff)^0x800000)-0x800000
                u24=lambda z:z.astype(np.int64)&0xffffff
                W=lambda z:(np.asarray(z).astype(np.int64)&0xffffffff).astype(U)
                L=lambda z:z.astype(np.int64)
                if op=="v_mov_b32": r=x[0]
                elif op=="v_add_u32": r=W(L(x[0])+L(x[1]))
                elif op=="v_sub_u32": r=W(L(x[0])-L(x[1]))
                elif op=="v_subrev_u32": r=W(L(x[1])-L(x[0]))
                elif op=="v_add3_u32": r=W(L(x[0])+L(x[1])+L(x[2]))
                elif op=="v_lshl_add_u32": r=W((L(x[0])<<(L(x[1])&31))+L(x[2]))
                elif op=="v_add_lshl_u32": r=W((L(x[0])+L(x[1]))<<(L(x[2])&31))
                elif op=="v_lshl_or_b32": r=W((L(x[0])<<(L(x[1])&31))|L(x[2]))
                elif op=="v_and_or_b32": r=(x[0]&x[1])|x[2]
                elif op=="v_or3_b32": r=x[0]|x[1]|x[2]
                elif op=="v_lshlrev_b32": r=W(L(x[1])<<(L(x[0])&31))
                elif op=="v_lshrrev_b32": r=W(L(x[1])>>(L(x[0])&31))
                elif op=="v_and_b32": r=x[0]&x[1]
                elif op=="v_or_b32": r=x[0]|x[1]
                elif op=="v_xor_b32": r=x[0]^x[1]
                elif op=="v_mul_u32_u24": r=W(u24(x[0])*u24(x[1]))
                elif op=="v_mul_i32_i24": r=W(i24(x[0])*i24(x[1]))
                elif op=="v_mul_lo_u32": r=W((x[0].astype(np.uint64)*x[1].astype(np.uint64))&np.uint64(0xffffffff))
                elif op=="v_mad_u32_u24": r=W(u24(x[0])*u24(x[1])+L(x[2]))
                elif op=="v_mad_i32_i24": r=W(i24(x[0])*i24(x[1])+L(x[2]))
                elif op=="v_bfe_u32": r=W((L(x[0])>>(L(x[1])&31))&((1<<(L(x[2])&31))-1))
                elif op=="v_max_i32": r=np.maximum(x[0].view(np.int32),x[1].view(np.int32)).view(U)
                elif op=="v_min_i32": r=np.minimum(x[0].view(np.int32),x[1].view(np.int32)).view(U)
                elif op=="v_med3_i32":
                    a,b,c=[z.view(np.int32) for z in x]; r=np.maximum(np.minimum(a,b),np.minimum(np.maximum(a,b),c)).view(U)
                elif op=="v_min_u32": r=np.minimum(x[0],x[1])
                elif op=="v_max_u32": r=np.maximum(x[0],x[1])
                elif op=="v_mbcnt_lo_u32_b32": r=W(np.minimum(LANES,32).astype(np.int64)+L(x[1]))
                elif op=="v_mbcnt_hi_u32_b32": r=W(np.maximum(LANES.astype(np.int64)-32,0)+L(x[1]))
                elif op=="v_perm_b32":
                    both=(x[0].astype(np.uint64)<<np.uint64(32))|x[1].astype(np.uint64); r=np.zeros(64,dtype=U)
                    for k in range(4):
                        sel=(x[2]>>U(8*k))&U(255)
                        byte=np.where(sel<8,(both>>(np.minimum(sel,7).astype(np.uint64)*np.uint64(8)))&np.uint64(255),np.where(sel==12,0,0xff)).astype(U)
                        assert ((sel<8)|(sel>=12)).all()
                        r|=byte<<U(8*k)
                elif op=="v_mul_f32": r=u(f(x[0])*f(x[1]))
                elif op=="v_add_f32": r=u(f(x[0])+f(x[1]))
                elif op=="v_sub_f32": r=u(f(x[0])-f(x[1]))
                elif op=="v_fma_f32": r=u(f(x[0]).astype(np.float64)*f(x[1])+f(x[2]))
                elif op=="v_max_f32": r=u(np.fmax(f(x[0]),f(x[1])))
                elif op=="v_max3_f32": r=u(np.fmax(np.fmax(f(x[0]),f(x[1])),f(x[2])))
                elif op=="v_exp_f32":
                    e=np.exp2(f(x[0]).astype(np.float64)).astype(np.float32); r=u(np.where(np.abs(e)<1.17549435e-38,0,e))
                elif op=="v_rcp_f32": r=u(np.float32(1)/f(x[0]))
                elif op=="v_cvt_pk_bf16_f32": r=bf16r(f(x[0]))|(bf16r(f(x[1]))<<U(16))
                else: raise RuntimeError("unimpl "+t)
                s.dst(o[0],r); continue
            if op.startswith("ds_read"):
                _,d,n=s.reg(o[0]); s.chk(d,n); a=s.src(o[1])+U(s.off(mods))
                nb=4*n;
                if (a%U(min(nb,16))).any(): raise RuntimeError(f"misaligned {t}")
                raw=s.ldsread(a,nb); rec=s.ldsacc("r",a,nb)
                w=np.ascontiguousarray(raw).view(U).reshape(64,n)
                if op=="ds_read_b64_tr_b16":
                    h=np.ascontiguousarray(raw).view(np.uint16).reshape(4,16,4)
                    lp=np.arange(16); res=np.zeros((4,16,4),dtype=np.uint16)
                    for j in range(4): res[:,:,j]=h[:,4*j+(lp>>2),lp&3]
                    w=np.ascontiguousarray(res).view(U).reshape(64,2)
                for k in range(n): V[d+k]=w[:,k]
                e=(list(range(d,d+n)),rec,None,t); s.lq.append(e)
                for r in e[0]: s.pend[r]=e
                continue
            if op.startswith("ds_write"):
                _,d,n=s.reg(o[1]); s.chk(d,n); a=s.src(o[0])+U(s.off(mods)); nb=4*n
                if (a%U(min(nb,16))).any(): raise RuntimeError(f"misaligned {t}")
                if (a.astype(np.int64)+nb>len(s.wg.lds)).any(): raise RuntimeError(f"LDS write OOB {t}")
                data=np.ascontiguousarray(V[d:d+n].T).view(np.uint8).reshape(64,nb)
                s.wg.lds[a.astype(np.int64)[:,None]+np.arange(nb)[None,:]]=data
                s.lq.append(([],s.ldsacc("w",a,nb),None,t)); continue
            if op.startswith("buffer_"):
                lds="lds" in mods
                if lds: voff,srd,soff=o[0],o[1],o[2]
                else: voff,srd,soff=o[1],o[2],o[3]
                r=s.reg(srd)[1]; base=s.sget(r)|((s.sget(r+1)&0xffff)<<32); nrec=s.sget(r+2); assert s.sget(r+3)==0x20000 and s.sget(r+1)>>16==0
                b0,buf,name=mem.find(base); assert b0==base and nrec<=len(buf),(name,nrec,len(buf))
                nb={"dwordx4":16,"dwordx3":12,"dwordx2":8,"dword":4,"ushort":2,"short":2}[op.split("_")[2]]
                vo=(s.src(voff).astype(np.int64)+s.off(mods))&0xffffffff
                ok=(vo+nb<=nrec)
                a=vo+s.sval(soff)
                if (ok&(a+nb>len(buf))).any(): raise RuntimeError(f"global OOB via soffset: {t} {a[ok].max()}")
                idx=np.where(ok,a,0)[:,None]+np.arange(nb)[None,:]
                if "load" in op:
                    data=np.where(ok[:,None],buf[idx],0).astype(np.uint8)
                    if lds:
                        la=(s.m0&0xffffffff)+s.off(mods)+LANES.astype(np.int64)*nb
                        act=s.mask(0xffffffff|(s.exhi<<32)); la=la[act]; data=data[act]
                        if not ok[act].all(): raise RuntimeError("DMA lane out of range "+t)
                        if (la+nb>len(s.wg.lds)).any(): raise RuntimeError("DMA LDS OOB "+t)
                        rec=s.ldsacc("w",la.astype(U),nb)
                        def fin(la=la,data=data,nb=nb): s.wg.lds[la[:,None]+np.arange(nb)[None,:]]=data
                        s.vq.append(([],rec,fin,t))
                    else:
                        _,d,n=s.reg(o[0]); s.chk(d,n)
                        if nb==2: V[d]=np.ascontiguousarray(data).view(np.uint16).reshape(64).astype(U)
                        else:
                            w=np.ascontiguousarray(data).view(U).reshape(64,n)
                            for k in range(n): V[d+k]=w[:,k]
                        e=(list(range(d,d+n)),None,None,t); s.vq.append(e)
                        for q in e[0]: s.pend[q]=e
                else:
                    _,d,n=s.reg(o[0]); s.chk(d,n); assert name in("out","dbg","ws"),name
                    data=np.ascontiguousarray(V[d:d+n].T).view(np.uint8).reshape(64,4*n)[:,:nb]
                    buf[idx[ok]]=data[ok]
                    if name=="out": mem.wr[idx[ok]]+=1
                    s.vq.append(([],None,None,t))
                continue
            raise RuntimeError("unimpl "+t)

class WG:
    def __init__(s,lds): s.lds=np.full(lds,0xff,dtype=np.uint8); s.acc=[]

def races(wg,maxrep=10):
    rows=[]
    for k,(w,kind,e0,e1,ad,nb,t,pc) in enumerate(wg.acc):
        dw=np.unique((ad.astype(np.int64)[:,None]+np.arange(0,nb,4)[None,:])//4)
        rows.append(np.stack([dw,np.full_like(dw,k)],1))
    A=np.concatenate(rows); A=A[np.argsort(A[:,0],kind="stable")]
    seen=set(); n=0
    bounds=np.nonzero(np.diff(A[:,0]))[0]+1
    groups=np.split(A[:,1],bounds)
    sig=set()
    for g in groups:
        key=g.tobytes()
        if key in sig: continue
        sig.add(key)
        ws=[k for k in g if wg.acc[k][1]=="w"]
        for a in ws:
            A_=wg.acc[a]
            for b in g:
                B_=wg.acc[b]
                if A_[0]==B_[0]: continue
                if B_[1]=='w' and A_[6]==B_[6] and len(A_[4])==len(B_[4]) and ((A_[4]==B_[4]).all() or A_[4].min()>=160032): continue
                if A_[2]<=B_[3] and B_[2]<=A_[3]:
                    kk=(A_[7],B_[7])
                    if kk not in seen:
                        seen.add(kk); n+=1
                        if n<=maxrep: print(f"  RACE w{A_[0]} [{A_[2]},{A_[3]}] W pc{A_[7]} {A_[6]}  vs w{B_[0]} [{B_[2]},{B_[3]}] {B_[1]} pc{B_[7]} {B_[6]}")
    return n

def run_wg(prog,labels,mem,wgid,nw=8,lds=163840,order=1,check=True):
    wg=WG(lds); ws=[Wave(wg,w,wgid,mem.base["ka"]) for w in range(nw)]
    while not all(w.done for w in ws):
        for w in ws[::order]:
            if not w.done: w.run(prog,labels,mem)
    eps={w.epoch for w in ws}
    assert len(eps)==1,eps
    nr=races(wg) if check and wg.acc else 0
    return wg,ws,nr

def make_inputs(seed=0,scale=0.4,rs=0.4):
    g=np.random.default_rng(seed)
    mk=lambda sc,*s: bf16r(bf2f(bf16r(g.standard_normal(s).astype(np.float32)))*np.float32(sc)).astype(np.uint16)
    return mk(scale,224,224,96),mk(0.4,96,288),mk(0.4,96,96),mk(rs,4,13,13)

def ref_pixels(x,wqkv,wo,rpb,pr,pc,i0,i1,j0,j1):
    X=bf2f(x[pr::2,pc::2]).astype(np.float32); W=bf2f(wqkv); B=bf2f(rpb); WO=bf2f(wo)
    r0=max(0,i0-6); r1=min(112,i1+6); c0=max(0,j0-6); c1=min(112,j1+6)
    qkv=bf2f(bf16r(X[r0:r1,c0:c1]@W)).reshape(r1-r0,c1-c0,3,4,24)
    out=np.zeros((i1-i0,j1-j0,96),dtype=np.float32)
    for i in range(i0,i1):
        sh=min(max(i-3,0),105)
        for j in range(j0,j1):
            sw=min(max(j-3,0),105)
            q=qkv[i-r0,j-c0,0]; k=qkv[sh-r0:sh-r0+7,sw-c0:sw-c0+7,1]; v=qkv[sh-r0:sh-r0+7,sw-c0:sw-c0+7,2]
            lg=np.einsum("nd,abnd->nab",q.astype(np.float64),k.astype(np.float64))*24**-0.5+B[:,sh-i+6:sh-i+13,sw-j+6:sw-j+13]
            lg=lg.reshape(4,49); p=np.exp(lg-lg.max(1,keepdims=True)); p/=p.sum(1,keepdims=True)
            o=np.einsum("nk,knd->nd",p,v.reshape(49,4,24)).reshape(96)
            out[i-i0,j-j0]=bf2f(bf16r(o.astype(np.float32)))@WO
    return out

def setup(x,wqkv,wo,rpb):
    out=np.full(224*224*96*2,0xee,dtype=np.uint8)
    bufs=[("x",x.reshape(-1).view(np.uint8)),("wqkv",wqkv.reshape(-1).view(np.uint8)),("wo",wo.reshape(-1).view(np.uint8)),("rpb",rpb.reshape(-1).view(np.uint8)),
          ("out",out),("dbg",np.zeros(256,dtype=np.uint8)),("ws",np.zeros(1<<22,dtype=np.uint8)),("ka",np.zeros(56,dtype=np.uint8))]
    mem=Mem(bufs)
    ka=np.array([mem.base[n] for n in("x","wqkv","wo","rpb","out","dbg","ws")],dtype=np.uint64)
    bufs[-1][1][:]=ka.view(np.uint8)
    mem.wr=np.zeros(len(out),dtype=np.uint8); mem.out=out
    return mem

if __name__=="__main__":
    path=sys.argv[1]; wgs=eval(sys.argv[2]) if len(sys.argv)>2 else [0]
    scale=float(sys.argv[3]) if len(sys.argv)>3 else 0.4
    prog,labels=parse(path)
    ins=make_inputs(1,scale); mem=setup(*ins)
    for b in wgs:
        mem.wr[:]=0
        wg,ws,nr=run_wg(prog,labels,mem,b,order=1 if b%2 else -1)
        wr=mem.wr.reshape(224,224,192); ys,xs=np.nonzero(wr.any(2))
        if len(ys)==0: print("wg",b,"wrote nothing"); continue
        pr,pc=ys.min()&1,xs.min()&1; i0,i1,j0,j1=ys.min()//2,ys.max()//2+1,xs.min()//2,xs.max()//2+1
        full=(wr[pr::2,pc::2][i0:i1,j0:j1]>=1).all(); npx=len(ys); mx=wr.max()
        o=bf2f(mem.out.view(np.uint16).reshape(224,224,96)[pr::2,pc::2][i0:i1,j0:j1])
        r=ref_pixels(*ins,pr,pc,i0,i1,j0,j1)
        err=np.abs(o-r); rel=np.sqrt((err**2).sum()/(r**2).sum())
        print(f"wg {b}: class({pr},{pc}) rows[{i0},{i1}) cols[{j0},{j1}) npx {npx} full {full} maxwr {mx} races {nr} rel {rel:.4g} maxerr {np.nanmax(err):.3g} nan {np.isnan(o).sum()} nins {ws[0].nins},{ws[7].nins}")
        if not rel<0.02:
            e=np.sqrt((err**2).sum(2)/(r**2).sum(2)); np.set_printoptions(linewidth=200,precision=2,suppress=True); print(e)
            e=np.sqrt((err**2).sum((0,1))/(r**2).sum((0,1))); print(e)
```

```python
import re, sys
P=dict(lds_lat=64, ds_gap=2, mf_prio=True, vm_cost=4, vm_lat=500, bar_lat=2, ret128=4, wblock=True)
def classify(t, lc=None):
    op=t.split()[0]
    if op.startswith("v_mfma"): return ("M", 8 if "32x32" in op else 4)
    if op in("v_exp_f32","v_rcp_f32") or op.startswith("v_permlane"): return ("V",2)
    if op.startswith("v_pk"): return ("K",1)
    if op.startswith("v_"): return ("V",1)
    if op.startswith("ds_read"):
        base={"ds_read_b128":4}.get(op,2); return ("R", lc or base, 4 if op=="ds_read_b128" else 2)
    if op.startswith("ds_write"):
        sl={"ds_write_b32":2,"ds_write_b64":3,"ds_write_b128":5}[op]; base={"ds_write_b32":4,"ds_write_b64":6,"ds_write_b128":13}[op]
        return ("W", max(base,lc or 0), sl)
    if op=="s_nop": return ("N", int(t.split()[1])+1)
    if op=="s_waitcnt":
        m=re.search(r"lgkmcnt\((\d+)\)",t); v=re.search(r"vmcnt\((\d+)\)",t)
        return ("X", int(m.group(1)) if m else None, int(v.group(1)) if v else None)
    if op=="s_barrier": return ("B",)
    if op.startswith("buffer"): return ("G",)
    return ("S",)
def simulate(streams, prio=None, trace=None):
    nw=len(streams); pc=[0]*nw; rdy=[0]*nw; dsok=[0]*nw; lq=[[] for _ in range(nw)]; vq=[[] for _ in range(nw)]
    port=[0]*4; pipe=[0]*4; wx=[0]*4; mfdone=[0]*4; retp=[0]*4
    lds_free=0.0; atbar=[False]*nw; done=[False]*nw; end=[0]*nw; bars=[]
    t=0; order=[[s,s+4] if nw==8 else [s] for s in range(4)]
    if prio: order=[sorted(o,key=lambda w:-prio[w]) for o in order]
    pbusy=0
    while not all(done):
        for s in range(4):
            usedL=False; usedS=False
            ws=order[s]
            if P["mf_prio"] and len(ws)==2:
                b=ws[1]
                if not done[b] and not atbar[b] and streams[b][pc[b]][0]=="M" and (done[ws[0]] or atbar[ws[0]] or streams[ws[0]][pc[ws[0]]][0]!="M"): ws=[b,ws[0]]
            for w in ws:
                if done[w] or atbar[w] or rdy[w]>t: continue
                ins=streams[w][pc[w]]; k=ins[0]
                if k=="M":
                    if port[s]>t or pipe[s]>t or (P["wblock"] and wx[s]>t): continue
                    port[s]=t+2; pipe[s]=t+ins[1]; rdy[w]=t+2; mfdone[s]=t+ins[1]+3
                elif k=="V":
                    if port[s]>t: continue
                    port[s]=t+ins[1]; rdy[w]=t+ins[1]; dsok[w]=t+ins[1]+P["ds_gap"]
                elif k=="K":
                    if port[s]>t or mfdone[s]>t: continue
                    port[s]=t+1; rdy[w]=t+1; dsok[w]=t+1+P["ds_gap"]
                elif k=="R" or k=="W":
                    if usedL or dsok[w]>t or lds_free>4*t+P.get("lq",64): continue
                    usedL=True
                    st=max(lds_free,4*t); lds_free=st+ins[1]
                    if k=="R":
                        r=max(retp[s],lds_free+P["lds_lat"])+ (P["ret128"] if ins[2]==4 else 0); retp[s]=r
                        lq[w].append(r/4); rdy[w]=t+1
                    else:
                        lq[w].append((lds_free+P["lds_lat"])/4); rdy[w]=t+ins[2]; wx[s]=t+ins[2]
                elif k=="N": rdy[w]=t+ins[1]
                elif k=="X":
                    q=lq[w]
                    while q and q[0]<=t: q.pop(0)
                    if ins[1] is not None and len(q)>ins[1]: continue
                    q=vq[w]
                    while q and q[0]<=t: q.pop(0)
                    if ins[2] is not None and len(q)>ins[2]: continue
                    rdy[w]=t+1
                elif k=="B": atbar[w]=True
                elif k=="G":
                    if dsok[w]>t: continue
                    rdy[w]=t+P["vm_cost"]; vq[w].append(t+P["vm_lat"]/4)
                else:
                    if usedS: continue
                    usedS=True; rdy[w]=t+1
                if trace is not None: trace.append((t,w,pc[w]))
                pc[w]+=1
                if pc[w]>=len(streams[w]): done[w]=True; end[w]=t
        if any(atbar) and all(atbar[w] or done[w] for w in range(nw)):
            bars.append(t)
            for w in range(nw):
                if atbar[w]: atbar[w]=False; rdy[w]=t+P["bar_lat"]
        t+=1
    return bars,end
def from_file(path,b=100):
    import emu, conf
    prog,labels=emu.parse(path); ins=emu.make_inputs(1); mem=emu.setup(*ins)
    tr=[[] for _ in range(8)]
    orig=emu.Wave.run
    class PL(list):
        def __init__(s,l): super().__init__(l); s.cur=None
        def __getitem__(s,i):
            tr[s.cur].append(i); return list.__getitem__(s,i)
    pl=PL(prog)
    def run(self,prog_,labels_,mem_): pl.cur=self.w; return orig(self,pl,labels_,mem_)
    emu.Wave.run=run
    wg,ws,nr=emu.run_wg(prog,labels,mem,b,check=False)
    emu.Wave.run=orig
    lc={}
    for (w,kind,e0,e1,ad,nb,t,pc) in wg.acc: lc[(w,pc-1)]=conf.cyc(t.split()[0],ad,nb)[0]
    return [[classify(prog[p][3],lc.get((w,p))) for p in tr[w]] for w in range(8)], tr, prog
if __name__=="__main__":
    for a in sys.argv[2:]:
        k,v=a.split("="); P[k]=eval(v)
    st,tr,prog=from_file(sys.argv[1])
    bars,end=simulate(st)
    pts=[4*x for x in bars]+[4*max(end)]
    print("bars",pts); print("diff",[pts[i+1]-pts[i] for i in range(len(pts)-1)], "total after B1",pts[-1]-pts[0])
```

```python
import sys, struct, math
from asmlib import *
from cosched import coschedule
import sim

NAME="standalone__neighborhood_dinat__vision"
OPT=dict(store_flags="", x_flags="", thr=2.0**64, force_safe=False, prof=False, prio=True, rpb_first=True, pref=True, xpos=(0,0,0,0), trials=1, quiet=False, cs={})
def f32(x): return "0x%08x"%struct.unpack("<I",struct.pack("<f",x))[0]
LOG2E=math.log2(math.e)
QSCALE=24**-0.5*LOG2E
WOB=76800; RB=95232; HB=7936; BS=4*HB+656; ONES=RB+4*HB; WB=70656; TB=RB+BS; FLAG=RB+2*BS; LDS_TOTAL=163840
assert FLAG+16<=LDS_TOTAL and WB+9*6144<=ONES
aX,aKw,aVw,aKr0,aKr1,aV00,aV01,aV10,aV11,tmax,qs,aQx0=range(12)
aOr=qs; aS2=aQx0
WKV=12; WQO=48; BIAS=84; QB=116; OB=140; KB=172; VB=188; SB=196; PB=212; XA=220; XB=232; ACC=244
aQx1=BIAS+7; aOw1=BIAS+15; aOw2=BIAS+23; aS1=BIAS+31
aKr=[aKr0,aKr1]; aV0=[aV00,aV01]; aV1=[aV10,aV11]; aQx=[aQx0,aQx1]
def Qr(s): return WQO+24 if s==0 else QB+4*(s-1)
Cb=WQO+28; Cc=WQO+32; Ca=OB+24
def Or(s): return OB+8*(s%4)
def Wkv(n,ks): return WKV+12*n+4*ks
def Wq(n,ks): return WQO+12*n+4*ks
xva,wqb,xal,w1=QB+20,QB+21,QB+22,QB+23
wa,wb_,wc,wqa=QB+16,QB+17,QB+18,QB+19
lane,li,lg,l4,cc,gb,w2=range(XA,XA+7)
rbv=[XA+11,XA+12,XA+13,XA+14]
sX=16; sW=20; sR=24; sO=28; sL=32
sw,sh,sstr,srb,sr0,sc0,sxm,s384,s111,sflip,sty,stx,sxo,sRH,snh,sdOr,sLm,sLo,sF,swm=range(36,56)
ST=list(range(56,64))
sMa,sMb,sMc,sMd=64,66,68,70
v=lambda r:f"v{r}"
s=lambda r:f"s{r}"

def common_setup():
    st0,st1,st2,st3=ST[:4]
    p=[V("v_lshrrev_b32","v1",6,"v0"), S("s_bfe_u32",s(stx),"s2","0x20004"), V("v_readfirstlane_b32",s(sw),"v1"),
       S("s_and_b32",s(st1),"s2",4), S("s_or_b32",s(stx),s(stx),s(st1)),
       S("s_lshr_b32",s(sty),"s2",6), S("s_and_b32",s(st1),"s2",2), S("s_lshl1_add_u32",s(sty),s(st1),s(sty)),
       S("s_and_b32",s(st2),"s2",1), S("s_bfe_u32",s(st3),"s2","0x10003"), S("s_mulk_i32",s(st3),192),
       S("s_mov_b32",s(sstr),86016),
       S("s_cmp_eq_u32",s(sty),7), S("s_cselect_b32",s(sflip),1,0), S("s_cselect_b32",s(sty),0,s(sty)),
       S("s_cselect_b32",s(st1),222,0), S("s_cselect_b32",s(sstr),-86016,s(sstr)),
       S("s_add_u32",s(st1),s(st1),s(st2)), S("s_mul_i32",s(srb),s(st1),43008), S("s_add_u32",s(srb),s(srb),s(st3)),
       S("s_mul_i32",s(sr0),s(sty),14), S("s_sub_u32",s(sr0),s(sr0),3),
       S("s_mul_i32",s(sc0),s(stx),14), S("s_sub_u32",s(sc0),s(sc0),3),
       S("s_movk_i32",s(s384),384), S("s_movk_i32",s(s111),111), S("s_and_b32",s(sh),s(sw),3),
       S("s_mov_b32",s(sX+2),9633792), S("s_mov_b32",s(sX+3),"0x00020000")]
    return p
def late_setup():
    p=[]
    for b,n in ((sO,9633792),(sL,18432)): p+=[S("s_mov_b32",s(b+2),n), S("s_mov_b32",s(b+3),"0x00020000")]
    return p
EXX="0x0fffffff"; EXW="0xffff"
def xpiece(i,bk,after=None,**kw):
    return [S("s_add_u32",s(sxo),s(sxo),s(srb),after=after), S("s_add_u32","m0",s(sxm),7680*i,after=after),
            S("s_mov_b32","exec_hi",EXX,after=after), DMA(xva,sX,s(sxo),0,flags=OPT["x_flags"],before=bk,after=after), S("s_mov_b32","exec_hi",-1)]
def dma3(voff,srd,soff,sbase,add,bk,after=None,step=960,flags=""):
    q=[]
    for ks in range(3):
        q+=[S("s_add_u32","m0",s(sbase),add+step*ks,after=after), DMA(voff,srd,soff,64*ks,flags=flags,before=bk,after=after)]
    return q

def pro(safe):
    st0,st1,st2,st3,st4,st5,st6,st7=ST; ta,tb,tc=ACC,ACC+1,ACC+2
    P=[]
    if safe: P+=[V("v_mbcnt_lo_u32_b32",v(lane),-1,0), V("v_mbcnt_hi_u32_b32",v(lane),-1,v(lane)), S("s_mov_b32",s(srb),s(stx))]
    else: P+=[V("v_and_b32",v(lane),63,"v0")]
    P+=[V("v_mul_u32_u24",v(ta),43,v(lane)), S("s_mul_i32",s(st0),s(sh),5), S("s_lshr_b32",s(st1),s(sw),2), V("v_lshrrev_b32",v(ta),9,v(ta)),
        V("v_mad_i32_i24",v(tb),v(ta),-12,v(lane)), V("v_add_u32",v(ta),s(st0),v(ta)),
        V("v_xor_b32",v(tc),s(sw),v(ta)), V("v_add_u32",v(ta),s(sc0),v(ta)), V("v_lshrrev_b32",v(tc),1,v(tc)),
        V("v_med3_i32",v(ta),v(ta),0,s(s111)), V("v_and_b32",v(tc),2,v(tc)), V("v_mul_u32_u24",v(ta),s(s384),v(ta)),
        V("v_xor_b32",v(tb),v(tb),v(tc)), V("v_lshl_add_u32",v(xva),v(tb),4,v(ta)),
        S("s_mul_i32",s(sxm),s(sw),960),
        S("s_add_u32",s(st1),s(st1),s(sr0)), S("s_and_b32",s(st2),s(st1),7), S("s_max_i32",s(st2),s(st2),s(st1)), S("s_mul_i32",s(st2),s(st2),s(sstr)), S("s_add_u32",s(st2),s(st2),s(srb)),
        S("s_add_u32",s(st1),s(st1),2), S("s_and_b32",s(st3),s(st1),7), S("s_max_i32",s(st3),s(st3),s(st1)), S("s_mul_i32",s(st3),s(st3),s(sstr)), S("s_add_u32",s(st3),s(st3),s(srb))]
    rp_=[V("v_and_b32",v(li),15,v(lane)), V("v_lshrrev_b32",v(lg),4,v(lane)),
        S("s_mul_i32",s(st4),s(sh),338), S("s_cmp_eq_u32",s(sflip),1), S("s_cselect_b32",s(st5),-26,26), S("s_cselect_b32",s(st6),312,0),
        S("s_add_u32",s(st4),s(st4),s(st6)), S("s_movk_i32",s(sR+2),1352), S("s_mov_b32",s(sR+3),s(sX+3)),
        V("v_lshl_add_u32",v(ta),v(li),1,s(st4)), V("v_mad_i32_i24",v(rbv[0]),v(lg),s(st5),v(ta)), S("s_lshl_b32",s(st5),s(st5),2)]
    rp_+=[V("v_add_u32",v(rbv[m]),s(st5),v(rbv[m-1])) for m in range(1,4)]
    rl=[VLD("buffer_load_ushort",r,1,r,sR) for r in rbv]
    xl=[S("s_mov_b32","m0",s(sxm)), S("s_mov_b32","exec_hi",EXX), DMA(xva,sX,s(st2),0,flags=OPT["x_flags"],before=1),
        S("s_add_u32","m0",s(sxm),7680), RAW("s_nop 0"), DMA(xva,sX,s(st3),0,flags=OPT["x_flags"],before=1), S("s_mov_b32","exec_hi",-1)]
    wt=[] if safe else [RAW("s_waitcnt lgkmcnt(0)")]
    if OPT["rpb_first"]: P+=rp_+wt+rl+xl
    else: P+=wt+xl+rp_+rl
    if OPT["prio"] and not safe: P+=[RAW("s_setprio 1")]
    if OPT["pref"] and not safe:
        P+=[S("s_andn2_b32",s(st4),"s2",7), S("s_add_u32",s(st4),s(st4),s(sw)), S("s_lshl_b32",s(st4),s(st4),7),
            RAW(f"s_load_dword s8, s[{sW}:{sW+1}], s{st4}"), S("s_min_u32",s(st5),s(st4),18432-128), RAW(f"s_load_dword s9, s[{sL}:{sL+1}], s{st5}"),
            S("s_add_u32",s(st4),s(st4),32768), S("s_min_u32",s(st4),s(st4),55296-128), RAW(f"s_load_dword s3, s[{sW}:{sW+1}], s{st4}")]
    P+=[V("v_lshrrev_b32",v(l4),2,v(lane)), V("v_and_b32",v(cc),3,v(lane)), S("s_mul_i32",s(st4),s(sw),12),
        S("s_mov_b32",s(sW+2),55296), S("s_mov_b32",s(sW+3),s(sX+3)),
        V("v_add_u32",v(ta),s(st4),v(l4)), V("v_lshrrev_b32",v(tb),2,v(ta)), V("v_mul_u32_u24",v(ta),576,v(ta)),
        V("v_and_b32",v(tb),2,v(tb)), V("v_xor_b32",v(tb),v(tb),v(cc)), V("v_lshl_add_u32",v(w1),v(tb),4,v(ta)), V("v_xor_b32",v(w2),16,v(w1)),
        S("s_lshl_b32",s(swm),s(st4),6)]
    P+=[S("s_mov_b32","exec_hi",EXW)]
    for cg in range(3,9):
        P+=[S("s_add_u32","m0",s(swm),WB+cg*6080), DMA(w1 if cg<6 else w2,sW,0,64*cg,before=1)]
    P+=[S("s_mov_b32","exec_hi",-1)]
    if OPT["prio"] and not safe: P+=[RAW("s_setprio 0")]
    P+=[S("s_mul_i32",s(sxo),s(st1),s(sstr)), S("s_add_u32",s(sxo),s(sxo),s(srb)), S("s_mov_b32",s(stx),s(srb)), S("s_lshl_b32",s(srb),s(sstr),1)]
    if not safe: P+=late_setup()
    return P

def body(sg,safe):
    P=[]
    st0,st1,st2,st3,st4,st5,st6,st7=ST
    T=list(range(WKV,WQO+24))+list(range(QB,QB+16))+list(range(OB,OB+24))
    ti=iter(T)
    def tmp(n): return [next(ti) for _ in range(n)]
    rp,g02,c1,c3,ta,tb,tc=tmp(7)
    P+=[S("s_mov_b32",s(st5),WB-18432), S("s_movk_i32",s(st6),6144), S("s_mul_i32",s(st7),s(sh),3),
        V("v_lshl_add_u32",v(rp),v(lg),9,s(st5)), V("v_and_b32",v(ta),12,v(lane)), V("v_lshl_add_u32",v(rp),v(ta),4,v(rp)),
        V("v_lshrrev_b32",v(g02),3,v(lane)), V("v_and_b32",v(g02),2,v(g02)),
        V("v_lshrrev_b32",v(c1),1,v(cc)), V("v_and_b32",v(c3),v(c1),v(cc)),
        V("v_add3_u32",v(ta),s(st7),v(cc),12), V("v_mad_u32_u24",v(ta),v(c3),11,v(ta)),
        V("v_lshrrev_b32",v(tb),2,v(ta)), V("v_mad_u32_u24",v(wa),v(tb),s(st6),v(rp)),
        V("v_xor_b32",v(ta),v(ta),v(g02)), V("v_xor_b32",v(ta),v(ta),v(c3)), V("v_and_b32",v(ta),3,v(ta)),
        V("v_lshl_add_u32",v(wa),v(ta),4,v(wa)), V("v_lshl_add_u32",v(wa),v(c1),3,v(wa)), V("v_xor_b32",v(wb_),8,v(wa)),
        S("s_movk_i32",s(st5),-18432), V("v_mad_i32_i24",v(wqa),v(c3),s(st5),v(wa)), V("v_xor_b32",v(wqb),8,v(wqa))]
    ta,tb=tmp(2)
    P+=[V("v_add3_u32",v(ta),s(st7),v(c1),24), V("v_lshrrev_b32",v(tb),2,v(ta)), V("v_mad_u32_u24",v(wc),v(tb),s(st6),v(rp)),
        V("v_xor_b32",v(ta),v(ta),v(g02)), V("v_xor_b32",v(ta),1,v(ta)), V("v_and_b32",v(ta),3,v(ta)),
        V("v_lshl_add_u32",v(wc),v(ta),4,v(wc)), V("v_and_b32",v(tc),1,v(cc)), V("v_lshl_add_u32",v(wc),v(tc),3,v(wc))]
    g1280,c704,ta,tb=tmp(4)
    P+=[V("v_lshrrev_b32",v(ta),1,v(li)), V("v_and_b32",v(ta),2,v(ta)), V("v_xor_b32",v(ta),v(ta),v(lg)), V("v_mul_u32_u24",v(tb),192,v(li)), V("v_lshl_add_u32",v(aX),v(ta),4,v(tb)),
        S("s_mul_i32",s(sRH),s(sh),HB), S("s_add_u32",s(sRH),s(sRH),RB),
        V("v_mul_u32_u24",v(g1280),1280,v(lg)), V("v_add_u32",v(g1280),s(sRH),v(g1280)), V("v_lshl_add_u32",v(aKw),v(li),4,v(g1280)),
        V("v_mul_u32_u24",v(tb),704,v(lg)), V("v_lshl_add_u32",v(ta),v(li),3,s(sRH)), V("v_add_u32",v(aVw),v(ta),v(tb))]
    qr,qc,q7=tmp(3)
    P+=[V("v_add_u32",v(q7),4,v(lane)), V("v_bfe_u32",v(qr),v(q7),3,1), V("v_and_b32",v(q7),7,v(q7)), V("v_min_u32",v(qc),6,v(q7))]
    ba=tmp(7); lo,base0,qc3,g3,ta,kc=tmp(6); ninf=aQx1
    P+=[S("s_add_u32",s(st0),s(sc0),7*sg), V("v_add_u32",v(ta),s(st0),v(qc)), V("v_max_i32",v(ta),0,v(ta)), V("v_min_i32",v(ta),105,v(ta)),
        V("v_subrev_u32",v(lo),s(st0),v(ta)),
        S("s_lshl_b32",s(st1),s(sw),10), S("s_add_u32",s(st1),s(st1),TB), S("s_add_u32",s(st3),s(st1),192),
        V("v_lshlrev_b32",v(ta),6,v(qr)), V("v_sub_u32",v(base0),s(st3),v(ta)),
        V("v_sub_u32",v(qc3),3,v(qc)), V("v_lshrrev_b32",v(g3),1,v(lg)), V("v_and_b32",v(g3),v(g3),v(lg)),
        V("v_mov_b32",v(ninf),"0xff800000"), V("v_mov_b32",v(kc),"0x6408640c")]
    gm,base1=tmp(2)
    P+=[V("v_sub_u32",v(gm),v(lg),v(g3)), V("v_lshl_add_u32",v(base1),v(g3),6,v(base0))]
    mk=[sMa,sMb,sMc,sMd]
    for j in range(7):
        t,r=divmod(j,4); ta,tb=tmp(2); m=mk[j%4]
        if t==0:
            if r==0: P+=[V("v_lshlrev_b32",v(ta),2,v(lg))]
            else: P+=[V("v_lshl_add_u32",v(ta),v(gm),2,r)]
        elif r<2: P+=[V("v_lshl_add_u32",v(ta),v(lg),1,r)]
        else: P+=[V("v_lshlrev_b32",v(tb),3,v(lg)), V("v_bfe_u32",v(ta),v(kc),v(tb),8)]
        P+=[V("v_sub_u32",v(tb),v(ta),v(lo)), V("v_add_u32",v(ta),v(ta),v(qc3)), V("v_cmp_gt_u32",sr(m,2),7,v(tb)),
            V("v_cndmask_b32",v(ta),13,v(ta),sr(m,2)), V("v_lshl_add_u32",v(ba[j]),v(ta),2,v(base1 if (t==0 and r>0) else base0))]
    OFF1=[20,21,32,1,22,23,2,3,24,25,28,29,26,27,30,31]
    k=[sum(OFF1[4*a+b]<<(8*b) for b in range(4)) for a in range(4)]
    kv=[KB,KB+1,KB+2,KB+3]
    P+=[V("v_mov_b32",v(kv[a]),"0x%08x"%k[a]) for a in range(4)]
    T2=iter(list(range(KB+4,SB))+list(range(SB+4,XA)))
    def tm2(n): return [next(T2) for _ in range(n)]
    def off_of(x,m):
        d0,d1,ta,tb,tc=tm2(5)
        return d0,d1,[V("v_add_u32",v(ta),3,v(x)), V("v_and_b32",v(ta),16,v(ta)), V("v_add_u32",v(d0),v(ta),v(x)),
                V("v_and_b32",v(ta),7,v(x)), V("v_or_b32",v(ta),"0x0c0c0c00",v(ta)), V("v_cmp_gt_u32",sr(m,2),8,v(x)),
                V("v_perm_b32",v(tb),v(kv[1]),v(kv[0]),v(ta)), V("v_perm_b32",v(tc),v(kv[3]),v(kv[2]),v(ta)),
                V("v_cndmask_b32",v(d1),v(tc),v(tb),sr(m,2))]
    o0,o1,q=off_of(li,sMd); P+=q
    P+=[V("v_lshl_add_u32",v(aKr0),v(o0),4,v(g1280)), V("v_lshl_add_u32",v(aKr1),v(o1),4,v(g1280))]
    o0,o1,q=off_of(l4,sMa); P+=q
    ta,tb=tm2(2)
    P+=[V("v_mul_u32_u24",v(c704),704,v(cc)), V("v_add_u32",v(c704),s(sRH),v(c704)),
        V("v_lshl_add_u32",v(aV00),v(o0),3,v(c704)), V("v_lshl_add_u32",v(aV01),v(o1),3,v(c704)),
        S("s_add_u32",s(st0),s(sRH),3840+112*sg), V("v_lshl_add_u32",v(ta),v(cc),3,s(st0)), V("v_cmp_gt_u32",sr(sMb,2),2,v(cc)),
        V("v_lshl_add_u32",v(aV10),v(o0),4,v(ta)), V("v_lshl_add_u32",v(aV11),v(o1),4,v(ta)),
        V("v_mov_b32",v(tb),ONES),
        V("v_cndmask_b32",v(aV10),v(tb),v(aV10),sr(sMb,2)), V("v_cndmask_b32",v(aV11),v(tb),v(aV11),sr(sMb,2))]
    one=PB
    if sg==0:
        P+=[V("v_mov_b32",v(one),"0x3f803f80"), V("v_mov_b32",v(one+1),"0x3f803f80")]
        for o in (0,640,BS,BS+640): P+=[DSW("ds_write_b64",tb,one,2,o,before=1)]
    P+=[V("v_mov_b32",v(tmax),0)]
    if sg==1: P+=[DSW("ds_write_b32",tb,tmax,1,FLAG-ONES,before=1)]
    re=tm2(1)[0]; tw=[]
    P+=[V("v_lshl_add_u32",v(re),v(lane),2,s(st1)), V("v_cmp_gt_u32","vcc",13,v(li))]
    for m,rb in enumerate(rbv):
        P+=[V("v_lshlrev_b32",v(rb),16,v(rb)), V("v_mul_f32",v(rb),f32(LOG2E),v(rb)), V("v_cndmask_b32",v(rb),v(ninf),v(rb),"vcc"),
            DSW("ds_write_b32",re,rb,1,256*m)]
        tw.append(P[-1])
    for b in range(5):
        for j in range(7):
            P+=[DSR("ds_read_b32",(BIAS+8*b if b<4 else Ca)+j,1,ba[j],128*b+(64 if j>=4 else 0),before=1,opt=tw,lc=3 if 1<=j<=3 else 2)]
    ta,tb,tc=tm2(3)
    P+=[V("v_mad_u32_u24",v(ta),v(qr),20,v(qc)), V("v_add_u32",v(ta),63+7*sg,v(ta))]
    P+=[V("v_lshrrev_b32",v(tb),1,v(ta)), V("v_and_b32",v(tb),2,v(tb)), V("v_xor_b32",v(tb),v(tb),v(lg)),
        V("v_mul_u32_u24",v(tc),192,v(ta)), V("v_lshl_add_u32",v(aQx0),v(tb),4,v(tc))]
    ta,tb=tm2(2)
    P+=[V("v_mov_b32",v(ta),f32(QSCALE)), V("v_add_u32",v(tb),-1,v(g3)), V("v_and_b32",v(qs),v(ta),v(tb))]
    P+=[S("s_lshr_b32",s(st0),s(sh),1), S("s_and_b32",s(snh),s(sh),1), S("s_lshl_b32",s(st3),s(st0),10), S("s_lshl3_add_u32",s(st3),s(snh),s(st3)),
        V("v_lshl_add_u32",v(aOw1),v(lane),4,s(st3)), S("s_lshl_b32",s(st3),s(sh),2), V("v_lshl_add_u32",v(aOw2),v(lane),4,s(st3)),
        S("s_mul_i32",s(sdOr),s(st0),3072), S("s_sub_u32",s(sdOr),s(sdOr),s(st3))]
    ta,tb=tm2(2)
    P+=[S("s_mul_i32",s(st0),s(st0),7), S("s_add_u32",s(st0),s(st0),s(sc0)), S("s_add_u32",s(st0),s(st0),3),
        V("v_add_u32",v(ta),s(st0),v(qc)),
        S("s_mul_i32",s(st3),s(snh),96), S("s_add_u32",s(st3),s(st3),s(stx)), V("v_lshl_add_u32",v(tb),v(lg),4,s(st3)),
        V("v_mad_u32_u24",v(ta),v(ta),s(s384),v(tb)),
        S("s_mul_i32",s(st3),s(sflip),12), S("s_add_u32",s(st3),s(st3),s(sr0)), S("s_add_u32",s(st3),s(st3),3),
        V("v_add_u32",v(tb),s(st3),v(qr)), V("v_mad_i32_i24",v(ta),v(tb),s(sstr),v(ta)), V("v_cmp_gt_u32",sr(sMc,2),7,v(q7)),
        V("v_mov_b32",v(tb),"0x80000000"), V("v_cndmask_b32",v(aS1),v(tb),v(ta),sr(sMc,2)),
        S("s_mul_i32",s(sF),s(sflip),6*172032)]
    ta,tb,tc=tm2(3)
    if sg==0:
        P+=[V("v_mul_u32_u24",v(ta),192,v(l4)), V("v_lshl_add_u32",v(xal),v(cc),4,v(ta)),
            S("s_mul_i32",s(sLo),s(sh),4608), S("s_mul_i32",s(sLm),s(sh),3072)]
    else:
        P+=[V("v_bfe_u32",v(tb),v(lane),3,1), V("v_mul_u32_u24",v(tb),24,v(tb)),
            V("v_bfe_u32",v(tc),v(lane),2,1), V("v_add3_u32",v(tb),v(tb),v(tc),20),
            V("v_mad_i32_i24",v(tb),v(g02),-2,v(tb)), V("v_and_b32",v(tc),2,v(lg)), V("v_add_u32",v(tb),v(tc),v(tb)),
            V("v_mul_u32_u24",v(tb),192,v(tb)), V("v_lshl_add_u32",v(xal),v(cc),4,v(tb)),
            S("s_mul_i32",s(sLo),s(snh),9216), S("s_mul_i32",s(sLm),s(snh),3072)]
    def setm(r,lo_,hi_): return [S("s_mov_b32",s(r),"0x%08x"%lo_), S("s_mov_b32",s(r+1),"0x%08x"%hi_)]
    def cnd(d,a,b_,m): return V("v_cndmask_b32",v(d),v(a),v(b_),sr(m,2))
    P+=setm(sMa,0x0FF00FF0,0x0FF00FF0)+setm(sMb,0x0FF00FF0,0x00000FF0)
    P+=[cnd(BIAS+j,BIAS+j,ninf,sMa if j==0 else sMb) for j in range(4)]
    P+=[S("s_cmp_eq_u32",s(sty),0), S("s_cselect_b64",sr(sMa,2),-1,0), S("s_mov_b32",s(sMb),s(sMa)), S("s_and_b32",s(sMb+1),s(sMa),"0xffff")]
    P+=[cnd(Ca+j,BIAS+j,Ca+j,sMa) for j in range(7)]
    P+=[cnd(Cb+j,BIAS+8+j,ninf,sMa if j==0 else sMb) for j in range(4)]
    P+=[cnd(Cc+j,BIAS+j,ninf,sMa if j==0 else sMb) for j in range(4)]
    P+=setm(sMc,0,0xF00F0000)+setm(sMd,0xF00FF00F,0xF00FF00F)
    P+=[S("s_andn2_b64",sr(sMb,2),sr(sMc,2),sr(sMa,2)), S("s_andn2_b64",sr(sMa,2),sr(sMd,2),sr(sMa,2))]
    P+=[cnd(BIAS+24+j,BIAS+24+j,ninf,sMb if j<4 else sMa) for j in range(1,7)]
    q=xpiece(2,3)+xpiece(3,3); q[0].pin=True
    P+=q+[BAR(1,pin=True)]
    xset=[XA,XA] if safe else [XA,XB]
    xi=[0]
    def nextx():
        xi[0]^=1; return xset[xi[0]^1]
    LAND={0:1,1:1,2:3,3:3,4:4,5:4,6:5,7:5,8:5,9:6}
    def landed(px): return LAND[px//40]
    def bufo(k): return BS if k%2==0 else 0
    def prod(k,j,acc=ACC):
        X=nextx(); t0=5*k+j; bump=30720 if k>=2 else 0
        q=[DSR("ds_read_b128",X+4*ks,4,aX,3072*t0+64*ks-bump,after=landed(16*t0+15),before=k+3) for ks in range(3)]
        for n in range(3):
            for ks in range(3): q+=[MF(acc+4*n,Wkv(n,ks),X+4*ks,None if ks==0 else acc+4*n)]
        for jj in range(6):
            dst=acc+jj if jj<4 else acc+4+jj
            q+=[V("v_cvt_pk_bf16_f32",v(dst),v(acc+2*jj),v(acc+2*jj+1))]
        af=k+2 if k else 1
        q+=[DSW("ds_write_b128",aKw,acc,4,bufo(k)+j*256,after=af,before=k+3), DSW("ds_write_b64",aVw,acc+8,2,bufo(k)+5120+j*128,after=af,before=k+3)]
        return q
    def prodn(k,i):
        if i<2: return prod(k,2*i+sg)
        return prod(k,4) if sg==1-(k&1) else []
    def mul2(r,src): return [V("v_mul_f32",v(r),v(src),v(r)), V("v_mul_f32",v(r+1),v(src),v(r+1))]
    def qproj(sx,acc=ACC):
        X=nextx(); af=landed(89+40*sx)
        q=[DSR("ds_read_b128",X+4*ks,4,aQx0,sx*7680+64*ks,after=af,before=af+1) for ks in range(3)]
        for n in range(2):
            for ks in range(3): q+=[MF(acc+4*n,Wq(n,ks),X+4*ks,None if ks==0 else acc+4*n)]
        for j in range(4): q+=mul2(acc+2*j,qs)+[V("v_cvt_pk_bf16_f32",v(Qr(sx)+j),v(acc+2*j),v(acc+2*j+1))]
        return q
    def kload(p):
        k=p>>1; o=bufo(k)+640*(p&1)+112*sg
        return [DSR("ds_read_b128",KB+8*(p&1)+4*t,4,aKr[t],o,after=k+3,before=k+4) for t in range(2)]
    def vload(p):
        k=p>>1; b=bufo(k)
        return ([DSR("ds_read_b64_tr_b16",VB+2*t,2,aV0[t],b+5120+56*sg+320*(p&1),after=k+3,before=k+4) for t in range(2)]+
                [DSR("ds_read_b64_tr_b16",VB+4+2*t,2,aV1[t],b+640*(p&1),after=k+3,before=k+4,lc=3) for t in range(2)])
    qi=[0]
    MX=XB; T1,T2_=XB+4,XB+5
    def qu(p,sx):
        b=p-sx; qi[0]^=1; Sr=SB+8*qi[0]; Pr=PB+4*qi[0]; O=Or(sx)
        c0,c1_=BIAS+8*b,BIAS+8*b+4
        if (sx,b)==(0,0): c0,c1_=Ca,Ca+4
        if (sx,b)==(0,1): c0=Cb
        if (sx,b)==(1,0): c0=Cc
        K=KB+8*(p&1)
        q=[MF(Sr,K,Qr(sx),c0), MF(Sr+4,K+4,Qr(sx),c1_)]
        if safe:
            m=MX+(sx%4); T2=T2_
            q+=[V("v_max3_f32",v(T1),v(Sr),v(Sr+1),v(Sr+2)), V("v_max3_f32",v(T1),v(T1),v(Sr+3),v(Sr+4)), V("v_max3_f32",v(T1),v(T1),v(Sr+5),v(Sr+6)),
                V("v_mov_b32",v(T2),v(T1)), V("v_permlane32_swap_b32",v(T1),v(T2)), V("v_max_f32",v(T1),v(T1),v(T2)),
                V("v_mov_b32",v(T2),v(T1)), V("v_permlane16_swap_b32",v(T1),v(T2))]
            if b==0: q+=[V("v_max_f32",v(m),v(T1),v(T2))]
            else:
                q+=[V("v_max3_f32",v(T1),v(T1),v(T2),v(m)), V("v_sub_f32",v(T2),v(m),v(T1)), V("v_exp_f32",v(T2),v(T2)), V("v_mov_b32",v(m),v(T1))]
                q+=[V("v_mul_f32",v(O+j),v(T2),v(O+j)) for j in range(8)]
            q+=[V("v_sub_f32",v(Sr+j),v(Sr+j),v(m)) for j in range(7)]
        for j in range(7):
            q+=[V("v_exp_f32",v(Sr+j),v(Sr+j))]
            if j&1: q+=[V("v_cvt_pk_bf16_f32",v(Pr+j//2),v(Sr+j-1),v(Sr+j))]
        q+=[V("v_cvt_pk_bf16_f32",v(Pr+3),v(Sr+6),0)]
        q+=[MF(O,VB,Pr,None if b==0 else O), MF(O+4,VB+4,Pr,None if b==0 else O+4)]
        return q
    def norm(sx):
        O=Or(sx); bk={0:5,1:6,2:6,3:7,4:7,5:8,6:8}[sx]; o=(2*sx+2+sg)*3072
        q=[V("v_permlane32_swap_b32",v(O+4),v(O+6)), V("v_permlane32_swap_b32",v(O+5),v(O+7)), V("v_rcp_f32",v(O+6),v(O+6))]
        if not safe: q+=[V("v_max3_f32",v(tmax),v(tmax),v(O+6),v(O+7))]
        for j in range(3): q+=mul2(O+2*j,O+6)+[V("v_cvt_pk_bf16_f32",v(O+j),v(O+2*j),v(O+2*j+1))]
        q+=[DSW("ds_write_b64",aOw1,O,2,o,after=bk-1,before=bk,lc=8), DSW("ds_write_b32",aOw2,O+2,1,o+2048,after=bk-1,before=bk,lc=8)]
        return q
    def outp(k4,acc=ACC):
        sx=2*k4-1+sg
        if sx<0: return []
        X=nextx(); so=ST[k4]
        q=[DSR("ds_read_b128",X+4*ks,4,aOr,(2*sx+2)*3072+1024*ks,after=k4+5) for ks in range(3)]
        q+=[S("s_mul_i32",s(so),s(srb),sx), S("s_add_u32",s(so),s(so),s(sF))]
        for n in range(3):
            for ks in range(3): q+=[MF(acc+4*n,Wq(n,ks),X+4*ks,None if ks==0 else acc+4*n)]
        for j in range(6):
            dst=acc+j if j<4 else acc+4+j
            q+=[V("v_cvt_pk_bf16_f32",v(dst),v(acc+2*j),v(acc+2*j+1))]
        q+=[VST("buffer_store_dwordx4",acc,4,aS1,sO,s(so),0,flags=OPT["store_flags"]),
            VST("buffer_store_dwordx2",acc+8,2,aS2,sO,s(so),64,flags=OPT["store_flags"])]
        return q
    def wfr(dst,ad,base,after,ks): return [DSR("ds_read_b64_tr_b16",dst+2*e,2,ad,base+ks*2048+e*256,after=after,before=3 if after==1 else 4) for e in range(2)]
    p0=prodn(0,0)
    P+=p0[:3]
    for n,ad in enumerate((wa,wb_,wc)):
        for ks in range(3): P+=wfr(Wkv(n,ks),ad,18432,1,ks)
    wq=[S("s_mov_b32","exec_hi",EXW)]
    for cg in range(3): wq+=[S("s_add_u32","m0",s(swm),WB+cg*6080), DMA(w1,sW,0,64*cg,before=3)]
    wq+=[S("s_mov_b32","exec_hi",-1)]
    P+=wq+p0[3:]+prodn(0,1)+prodn(0,2)+xpiece(4,4)
    P+=[BAR(3)]
    p1=prodn(1,0)
    P+=p1[:3]
    for n,ad in enumerate((wqa,wqb)):
        for ks in range(3): P+=wfr(Wq(n,ks),ad,0,3,ks)
    P+=xpiece(5,4,after=3)+p1[3:]+kload(0)+qproj(0)+xpiece(6,5)+vload(0)+kload(1)
    P+=qproj(1)+qu(0,0)+vload(1)+prodn(1,1)+xpiece(7,5)+qu(1,0)+prodn(1,2)+xpiece(8,5)
    P+=[V("v_add_u32",v(aX),30720,v(aX))]
    P+=[BAR(4)]
    P+=kload(2)+qproj(2)+qu(1,1)+vload(2)+kload(3)+dma3(xal,sL,s(sLo),sLm,WOB+12288*sg,5,after=4)+xpiece(9,6,after=4)
    P+=qu(2,0)+prodn(2,0)+qu(2,1)+qproj(3)+qu(2,2)+vload(3)+prodn(2,1)+qu(3,0)+norm(0)+qu(3,1)+prodn(2,2)
    P+=[BAR(5)]
    P+=kload(4)+qproj(4)+qu(3,2)+qproj(5)+qu(3,3)+vload(4)+kload(5)+qproj(6)+qu(4,1)+norm(1)
    tA,tB,tC,tD=ACC,ACC+1,ACC+2,ACC+3
    P+=[V("v_add_u32",v(aOr),s(sdOr),v(aOw2)),
        V("v_bfe_u32",v(tA),v(aOw2),8,2), V("v_mad_i32_i24",v(aS2),v(tA),-8,v(aS1)),
        V("v_bfe_u32",v(tA),v(aOw2),4,2),
        V("v_and_b32",v(tB),"0x3c0",v(aOw2)), V("v_add_u32",v(tB),WOB,v(tB)),
        S("s_mul_i32",s(st4),s(snh),6), V("v_add_u32",v(tC),s(st4),v(tA)),
        V("v_and_b32",v(tD),3,v(tC)), V("v_lshl_add_u32",v(tD),v(tD),4,v(tB)), V("v_lshrrev_b32",v(tC),2,v(tC)), V("v_lshl_add_u32",v(tD),v(tC),10,v(tD)),
        S("s_mul_i32",s(st4),s(snh),1024+32), S("s_add_u32",s(st4),s(st4),1024),
        V("v_lshl_add_u32",v(tC),v(tA),3,v(tB)), V("v_add_u32",v(tC),s(st4),v(tC))]
    for n in range(3):
        for ks in range(3):
            for e in range(2):
                P+=[DSR("ds_read_b64_tr_b16",Wq(n,ks)+2*e,2,tD if n<2 else tC,(2*ks+e)*3072+(8 if n==1 else 0),after=5,lc=4)]
    P+=prodn(3,0)+qu(4,2)
    P+=[cnd(BIAS+24+j,BIAS+24+j,aQx1,sMc if j<4 else sMd) for j in range(1,7)]
    P+=qu(4,3)+prodn(3,1)+qu(4,4)+vload(5)+qu(5,2)+norm(2)+prodn(3,2)+outp(0)+qu(5,3)
    P+=[BAR(6)]
    P+=kload(6)+qu(5,4)+outp(1)+qu(5,5)+vload(6)+kload(7)
    P+=qu(6,3)+norm(3)+prodn(4,0)+qu(6,4)+prodn(4,1)+qu(6,5)+qu(6,6)+vload(7)+qu(7,4)+norm(4)+prodn(4,2)
    P+=[BAR(7)]
    P+=kload(8)+qu(7,5)+outp(2)+qu(7,6)+vload(8)+kload(9)
    P+=qu(8,5)+norm(5)+qu(8,6)+vload(9)+qu(9,6)+norm(6)
    if not safe:
        P+=[V("v_mov_b32",v(WKV),FLAG), V("v_mov_b32",v(WKV+1),1), V("v_mov_b32",v(WKV+3),FLAG+4),
            V("v_cmp_nge_f32","vcc",f32(OPT["thr"]),v(tmax)), V("v_cndmask_b32",v(WKV+3),v(WKV+3),v(WKV),"vcc"),
            DSW("ds_write_b32",WKV+3,WKV+1,1,0,before=8)]
    P+=[BAR(8)]
    if not safe: P+=[DSR("ds_read_b32",WKV+2,1,WKV,0,after=8)]
    P+=outp(3)
    if not safe: P+=[V("v_readfirstlane_b32",s(st7),vr(WKV+2),pin=True), S("s_cmp_eq_u32",s(st7),1 if OPT["force_safe"] else 0,pin=True)]
    return P

def finalize(pre,streams,tag):
    br=[S("s_cmp_ge_u32",s(sw),4), I(f"s_cbranch_scc1 L_{tag}1","salu",su={"scc"})]
    res=[]
    for st in streams:
        fl=insert_nops(insert_waits(flatten(pre+br+st,tag)))
        k=[i for i,(x,_) in enumerate(fl) if x is br[1]][0]
        res.append((fl[:k+1],fl[k+1:]))
    assert emit(res[0][0])==emit(res[1][0])
    return res[0][0],res[0][1],res[1][1]

def evaluate(pre,a,b,**pp):
    old=dict(sim.P); sim.P.update(pp)
    st=[[sim.classify(x.text,x.lc) for x,_ in pre+(a if w<4 else b) if x.kind!="label"] for w in range(8)]
    bars,end=sim.simulate(st); sim.P.clear(); sim.P.update(old)
    pts=[4*x for x in bars]+[4*max(end)]
    return pts

def stamps(fl,mode,pre=False):
    out=[]; nv=0 if pre else 12; seen=set()
    st=lambda k:(RAW(f"s_memtime s[{72+2*k}:{73+2*k}]"),None)
    for i,(x,sg) in enumerate(fl):
        if mode==2 and x.kind=="wait" and i+1<len(fl) and fl[i+1][0].kind=="bar" and fl[i+1][0].bar==1: out.append(st(7))
        out.append((x,sg))
        if mode==1:
            if x.kind=="bar": out.append(st(x.bar))
        else:
            if x.kind=="raw" and "lgkmcnt(0)" in x.text: out.append(st(1))
            if x.kind in("dma","vld"):
                nv+=1
                if nv in(4,6,12,14): out.append(st({4:2,6:3,12:4,14:5}[nv]))
            if x.kind=="wait" and "vmcnt" in x.text and 6 not in seen: seen.add(6); out.append(st(6))
            if x.kind=="bar" and x.bar==1: out.append(st(8))
    return out

def build():
    pre=common_setup()+pro(False)
    prevm=[x for x in pre if x.kind in("dma","vld")]
    best=None
    for tr in range(OPT["trials"]):
        cs=dict(OPT["cs"]);
        if tr: cs["seed"]=tr; cs.setdefault("jitter",8.0)
        outs,bars,t=coschedule([body(0,False),body(1,False)],pre,prevm,**cs)
        f=finalize(pre,outs,"f")
        pts=evaluate(*f); pts2=evaluate(*f,lds_lat=128)
        sc=(pts[-1]-pts[0])+(pts2[-1]-pts2[0])
        if best is None or sc<best[0]: best=(sc,f,pts,pts2,tr,[4*b for b in bars]+[4*t])
    sc,f,pts,pts2,tr,own=best
    d=lambda p:[p[i+1]-p[i] for i in range(len(p)-1)]
    if not OPT["quiet"]:
        print("own",own[0],d(own),own[-1]-own[0]); print("sim",pts[0],d(pts),pts[-1]-pts[0],"| lat128",pts2[-1]-pts2[0],"trial",tr, "len",len(f[0]),len(f[1]),len(f[2]))
    fp,f0,f1=f
    spre=pro(True)
    so,_,_=coschedule([body(0,True),body(1,True)],spre,[x for x in spre if x.kind in("dma","vld")])
    sp,s0,s1=finalize(spre,so,"s")
    prol=""; epi=""
    if OPT["prof"]:
        fp=stamps(fp,OPT["prof"],True); f0=stamps(f0,OPT["prof"]); f1=stamps(f1,OPT["prof"])
        prol="    s_memtime s[72:73]\n    s_memrealtime s[92:93]\n    s_load_dwordx2 s[10:11], s[0:1], 48\n"
        e=["s_waitcnt vmcnt(0)","s_memtime s[90:91]","s_memrealtime s[94:95]","s_waitcnt lgkmcnt(0)",
           "s_mov_b32 s12, s10","s_mov_b32 s13, s11","s_mov_b32 s14, 0x1000000","s_mov_b32 s15, 0x00020000","v_mov_b32 v1, 0"]
        if OPT["prof"]==1: e+=["s_mov_b32 s76, s74"]
        for k in range(12): e.append(f"v_writelane_b32 v1, s{72+2*k}, {k}")
        e+=["s_getreg_b32 s72, hwreg(HW_REG_XCC_ID)","s_getreg_b32 s73, hwreg(HW_REG_HW_ID)","s_nop 1","v_writelane_b32 v1, s72, 12","v_writelane_b32 v1, s73, 13"]
        e+=["s_lshl_b32 s56, s2, 3",f"s_add_u32 s56, s56, s{sw}","s_lshl_b32 s56, s56, 6",
            "v_mbcnt_lo_u32_b32 v2, -1, 0","v_mbcnt_hi_u32_b32 v2, -1, v2","v_lshlrev_b32 v3, 2, v2","v_mov_b32 v4, 0x80000000","v_cmp_gt_u32 vcc, 16, v2","s_nop 1","v_cndmask_b32 v3, v4, v3, vcc",
            "buffer_store_dword v1, v3, s[12:15], s56 offen"]
        epi="\n".join("    "+x for x in e)+"\n"
    hdr=open("cdna_kernels/%s.s.ref"%NAME).read().split("; Override")[0]
    return f"""{hdr}; @launch grid=(256,1,1) block=(512,1,1) lds={LDS_TOTAL}
.amdgcn_target "amdgcn-amd-amdhsa--gfx950"
.text
.globl {NAME}_kernel
.p2align 8
.type {NAME}_kernel,@function
{NAME}_kernel:
{prol}    s_load_dwordx2 s[{sR}:{sR+1}], s[0:1], 24
    s_load_dwordx2 s[{sX}:{sX+1}], s[0:1], 0
    s_load_dwordx2 s[{sW}:{sW+1}], s[0:1], 8
    s_load_dwordx2 s[{sL}:{sL+1}], s[0:1], 16
    s_load_dwordx2 s[{sO}:{sO+1}], s[0:1], 32
{"    s_setprio 2"+chr(10) if OPT["prio"] else ""}    s_cmp_ge_u32 s2, 256
    s_cbranch_scc1 L_end
{emit(fp)}
{emit(f0)}
    s_cbranch_scc1 L_fin
    s_branch L_safe
L_f1:
{emit(f1)}
    s_cbranch_scc1 L_fin
L_safe:
    s_waitcnt vmcnt(0) lgkmcnt(0)
    s_barrier
{emit(sp)}
{emit(s0)}
    s_branch L_fin
L_s1:
{emit(s1)}
L_fin:
{epi}L_end:
    s_endpgm
.section .rodata,"a"
.p2align 6
.amdhsa_kernel {NAME}_kernel
  .amdhsa_next_free_vgpr 256
  .amdhsa_next_free_sgpr 96
  .amdhsa_accum_offset 256
  .amdhsa_group_segment_fixed_size 0
  .amdhsa_kernarg_size 56
  .amdhsa_user_sgpr_count 2
  .amdhsa_user_sgpr_kernarg_segment_ptr 1
  .amdhsa_system_sgpr_workgroup_id_x 1
.end_amdhsa_kernel
"""
if __name__=="__main__":
    for a in sys.argv[2:]:
        k,vv=a.split("=",1)
        if k.startswith("cs."): OPT["cs"][k[3:]]=eval(vv)
        else: OPT[k]=eval(vv)
    txt=build()
    open(sys.argv[1],"w").write(txt)
```
